```python
import torch

def _softmax(x, axis=-1):
    return torch.softmax(x, dim=axis)
def _gelu(x):
    return torch.nn.functional.gelu(x, approximate="tanh")
def _silu(x):
    return torch.nn.functional.silu(x)
def _sigmoid(x):
    return torch.sigmoid(x)
def _layernorm(x, axis=-1, eps=1e-5):
    m = x.mean(dim=axis, keepdim=True)
    v = x.var(dim=axis, keepdim=True, unbiased=False)
    return (x - m) / torch.sqrt(v + eps)
def _scatter_add(tgt, idx, src, axis=0):
    return tgt.clone().index_add_(axis, idx, src)
def _segment_sum(src, seg, n):
    out = torch.zeros((n,) + src.shape[1:], dtype=src.dtype)
    return out.index_add_(0, seg, src)
def _pad(x, pw):
    flat = tuple(v for pair in reversed(pw) for v in pair)
    return torch.nn.functional.pad(x, flat)

kernel_name = 'standalone__gqa_block_cached__near_ridge'

def setup_inputs():

    _w = (lambda a: (lambda t: t.to(torch.bfloat16) if t.is_floating_point() else t)(torch.as_tensor(a)))
    B, Sq, D = 16, 64, 512
    Hq, Hkv, Sk, Dh = 32, 8, 1024, 128
    assert Hq % Hkv == 0, (Hq, Hkv)
    return {
        "x": _w((lambda *s: torch.randn(*s, dtype=torch.bfloat16) * 0.8)(B, Sq, D)),
        "k_cache": _w((lambda *s: torch.randn(*s, dtype=torch.bfloat16) * 0.8)(B, Hkv, Sk, Dh)),
        "v_cache": _w((lambda *s: torch.randn(*s, dtype=torch.bfloat16) * 0.05)(B, Hkv, Sk, Dh)),
        "wq": _w((lambda *s: torch.randn(*s, dtype=torch.bfloat16) * 0.8)(D, Hq * Dh) * (D ** -0.5)),
        "wo": _w((lambda *s: torch.randn(*s, dtype=torch.bfloat16) * 0.05)(Hq * Dh, D) * ((Hq * Dh) ** -0.5)),
    }

def reference(x, k_cache, v_cache, wq, wo):
    B, Sq, D = x.shape
    Hq, Dh = 32, 128
    Hkv = k_cache.shape[1]
    rep = Hq // Hkv
    q = (lambda x, *d: x.permute(*d))((x @ wq).reshape(B, Sq, Hq, Dh), 0, 2, 1, 3)
    k = (lambda x, n, axis: torch.repeat_interleave(x, n, dim=axis))(k_cache, rep, axis=1)
    v = (lambda x, n, axis: torch.repeat_interleave(x, n, dim=axis))(v_cache, rep, axis=1)
    scores = torch.einsum("bhqd,bhkd->bhqk", q, k) * (Dh ** -0.5)
    p = _softmax(scores, axis=-1)
    o = torch.einsum("bhqk,bhkd->bhqd", p, v)
    return (lambda x, *d: x.permute(*d))(o, 0, 2, 1, 3).reshape(B, Sq, Hq * Dh) @ wo
```

```python
import re

REG_RE = re.compile(r"\b([vas])(?:\[(\d+):(\d+)\]|(\d+)\b)")


def regs_of(op):
    out = set()
    for m in REG_RE.finditer(op):
        f = m.group(1)
        if m.group(2) is not None:
            out.update((f, i) for i in range(int(m.group(2)), int(m.group(3)) + 1))
        else:
            out.add((f, int(m.group(4))))
    if re.search(r"\bvcc\b", op):
        out.add(("s", "vcc"))
    if re.search(r"\bm0\b", op):
        out.add(("s", "m0"))
    if re.search(r"\bexec\b", op):
        out.add(("s", "exec"))
    return out


TRANS = ("v_exp_f32", "v_log_f32", "v_rcp_f32", "v_rsq_f32", "v_sqrt_f32", "v_sin_f32", "v_cos_f32")


class Ins:
    __slots__ = ("text", "mn", "ops", "kind", "wr", "rd", "states", "srcc", "passes", "sdata")

    def __init__(self, text):
        self.text = text
        t = text.split(";")[0].strip()
        self.mn = t.split()[0] if t else ""
        rest = t[len(self.mn):].strip()
        self.ops = [o.strip() for o in rest.split(",")] if rest else []
        self.wr, self.rd = set(), set()
        self.states = 1
        self.srcc = set()
        self.passes = 0
        self.sdata = set()
        mn, ops = self.mn, self.ops
        R = regs_of
        if not t or t.endswith(":") or mn.startswith("."):
            self.kind = "label" if t.endswith(":") else "none"
            self.states = 0
        elif mn.startswith("v_mfma"):
            self.kind = "mfma"
            self.wr = R(ops[0])
            self.rd = R(ops[1]) | R(ops[2]) | R(ops[3])
            self.srcc = R(ops[3])
            self.passes = 8 if "32x32x16" in mn else 4
        elif mn.startswith("v_"):
            self.kind = "valu"
            self.wr = R(ops[0])
            for o in ops[1:]:
                self.rd |= R(o)
            if mn.startswith("v_permlane") and "swap" in mn:
                self.wr |= R(ops[1])
                self.rd |= R(ops[0])
            if mn.startswith(("v_fmac", "v_dot2c")):
                self.rd |= R(ops[0])
            if mn.startswith(("v_add_co", "v_addc_co", "v_sub_co", "v_subrev_co", "v_subb_co")):
                self.wr |= R(ops[1])
            if mn.startswith("v_cmpx"):
                self.wr.add(("s", "exec"))
            if mn.startswith("v_cndmask") and len(ops) == 3:
                self.rd.add(("s", "vcc"))
        elif mn.startswith("ds_"):
            self.kind = "ds"
            if mn.startswith(("ds_read", "ds_bpermute", "ds_permute", "ds_swizzle")):
                self.wr = R(ops[0])
                for o in ops[1:]:
                    self.rd |= R(o.split(" offset")[0])
            else:
                for o in ops:
                    self.rd |= R(o.split(" offset")[0])
        elif mn.startswith(("buffer_", "global_")):
            self.kind = "vmem"
            if mn.startswith("buffer_load") and re.search(r"\blds\b", t):
                for o in ops:
                    self.rd |= R(o)
                self.rd.add(("s", "m0"))
            elif mn.startswith(("buffer_load", "global_load")):
                self.wr = R(ops[0])
                for o in ops[1:]:
                    self.rd |= R(o)
            else:
                for o in ops:
                    self.rd |= R(o)
                if mn.endswith(("x4", "x3")) and "store" in mn:
                    self.sdata = R(ops[0]) if mn.startswith("buffer") else R(ops[1])
        elif mn == "s_nop":
            self.kind = "nop"
            self.states = int(ops[0], 0) + 1
        elif mn.startswith("s_"):
            self.kind = "salu"
            if mn.startswith(("s_cmp", "s_waitcnt", "s_barrier", "s_cbranch", "s_branch", "s_endpgm", "s_setprio",
                              "s_sleep")):
                for o in ops:
                    self.rd |= R(o)
            else:
                self.wr = R(ops[0]) if ops else set()
                for o in ops[1:]:
                    self.rd |= R(o)
        else:
            raise ValueError("unknown instruction: " + text)


def need_between(p, c):
    n = 0
    vec = lambda s: {r for r in s if r[0] in "va"}
    sc = lambda s: {r for r in s if r[0] == "s"}
    if p.kind == "valu":
        pw = vec(p.wr)
        if c.kind == "mfma" and pw & c.rd:
            n = max(n, 2)
        if c.kind == "valu":
            if p.mn.replace("_e32", "").replace("_e64", "") in TRANS and pw & (c.rd | c.wr):
                n = max(n, 1)
            if c.mn.startswith("v_permlane") and pw & c.rd:
                n = max(n, 2)
            if c.mn.startswith(("v_readfirstlane", "v_readlane")) and pw & c.rd:
                n = max(n, 1)
            if "dpp" in c.text or "row_" in c.text or "quad_perm" in c.text:
                if pw & c.rd:
                    n = max(n, 2)
            if sc(p.wr) & c.rd:
                n = max(n, 2)
        if c.kind == "vmem" and sc(p.wr) & c.rd:
            n = max(n, 5)
        if c.kind == "salu" and sc(p.wr) & c.rd:
            n = max(n, 1)
        if ("s", "exec") in p.wr and c.kind == "mfma":
            n = max(n, 4)
    if p.kind == "mfma":
        tab = {4: (8, 6, 3), 8: (12, 10, 7)}[p.passes]
        if c.kind == "mfma":
            ab = c.rd - c.srcc if not (c.srcc & (regs_of(c.ops[1]) | regs_of(c.ops[2]))) else c.rd
            if p.wr & ab:
                n = max(n, tab[0])
            if p.wr & c.srcc and not (p.wr == c.srcc and p.passes == c.passes):
                n = max(n, tab[1])
            if p.wr & c.wr and not (p.wr == c.srcc):
                n = max(n, tab[1])
        elif c.kind in ("valu", "ds", "vmem"):
            if p.wr & (c.rd | c.wr):
                n = max(n, tab[0])
            if c.kind == "valu" and p.srcc & c.wr:
                n = max(n, tab[2])
    if p.kind == "vmem" and p.sdata:
        if c.kind in ("valu", "mfma", "ds", "vmem") and p.sdata & c.wr:
            n = max(n, 2)
    if p.kind == "salu" and ("s", "m0") in p.wr and c.kind == "vmem" and ("s", "m0") in c.rd:
        n = max(n, 1)
    return n


def hazard_pass(lines, verbose=False):
    out = []
    hist = []
    pos = 0
    added = 0
    for ln in lines:
        ins = Ins(ln)
        if ins.kind in ("label", "none"):
            out.append(ln)
            continue
        short = 0
        for p, ppos in hist:
            dist = pos - ppos - 1 + 0
            nb = need_between(p, ins)
            if nb > dist:
                short = max(short, nb - dist)
                if verbose:
                    print("hazard:", p.text.strip(), "->", ins.text.strip(), "need", nb, "have", dist)
        while short > 0:
            k = min(short, 16)
            out.append(f"    s_nop {k-1}")
            pos += k
            short -= k
            added += k
        out.append(ln)
        hist.append((ins, pos + ins.states - 1))
        pos += ins.states
        hist = [(p, pp) for p, pp in hist if pos - pp <= 21]
    return out, added


class Queue:
    def __init__(self, name, maxv, emit):
        self.name, self.maxv, self.emit = name, maxv, emit
        self.q = []

    def push(self, tag):
        self.q.append(tag)

    def need(self, pred):
        last = -1
        for i, t in enumerate(self.q):
            if pred(t):
                last = i
        if last < 0:
            return
        n = len(self.q) - 1 - last
        n = min(n, self.maxv)
        self.emit(f"    s_waitcnt {self.name}({n})")
        self.q = self.q[len(self.q) - n:] if n else []

    def drain(self):
        if self.q:
            self.emit(f"    s_waitcnt {self.name}(0)")
        self.q = []
```

```python
import sys
import math
import struct
from asmlib import hazard_pass, Queue

KN = "standalone__gqa_block_cached__near_ridge_kernel"
RN = "gqa_reduce_kernel"
HEADER = """; Kernarg layout for this problem (64 bytes, ptrs only, base s[0:1]):
;   offset  56: d_ws      268435456 bytes workspace
"""


def f32(x):
    return "0x%08x" % struct.unpack("<I", struct.pack("<f", x))[0]


class Gen:
    def __init__(self, NQ=1, dump=None, stamps=False, opts=None):
        self.NQ = NQ
        self.NW = 8 // NQ
        self.IPW = 16 // self.NW
        self.dump = dump
        self.stamps = stamps
        self.o = dict(DMAX=6, BOFF=3, RPG=2, store_flags="sc1")
        self.o.update(opts or {})
        self.L = []
        self.lg = Queue("lgkmcnt", 15, self.e)
        self.vm = Queue("vmcnt", 63, self.e)
        self.nstamp = 0
        self.vKA, self.vVA, self.vWA, self.vXA, self.vOA = 16, 24, 28, 32, 40
        self.vDK, self.vDV, self.vDX, self.vDO, self.vDW = 42, 46, 47, 51, 55
        self.vST = 59
        self.vL, self.vM = 60, 62
        b = 64
        self.S = [b, b + 16 * NQ]
        self.C = b + 32 * NQ
        self.P = [b + 48 * NQ, b + 56 * NQ]
        self.OK = b + 64 * NQ
        self.ACC = b + 96 * NQ
        self.aOS = 0
        self.aQ = 32 * NQ
        self.aF = 64 * NQ
        self.NFB = 8
        self.sX, self.sWQ, self.sK, self.sV, self.sWO, self.sWS = 20, 24, 28, 32, 36, 40
        self.sW = 3
        self.sM0 = 52
        self.sT = 53
        self.EX = 131072

    def e(self, s):
        self.L.append(s if s.startswith("    ") or s.endswith(":") else "    " + s)

    def slot_addr(self, phi, upper):
        return (65536 if upper else 0) + (phi % 4) * 16384

    def stamp(self):
        if not self.stamps:
            return
        i = self.nstamp
        self.nstamp += 1
        assert i < 14
        self.lg.drain()
        self.e(f"s_memrealtime s[{72+2*i}:{73+2*i}]")
        self.e("s_waitcnt lgkmcnt(0)")

    def phases(self):
        ph = [("x0", "w0"), ("w1", "w2"), ("x1", "w3"), ("w4", "w5"), ("x2", "w6"), ("w7", "w8"),
              ("w9", "w10"), ("x3", "w11"), ("w12", "w13"), ("w14", "w15"), ("K0", "K1")]
        for t in range(1, 15):
            ph.append((f"K{t+1}", f"V{t-1}"))
        ph.append(("V14", "V15"))
        for n in range(8):
            ph.append((f"o{2*n}", f"o{2*n+1}"))
        return ph

    def dma_list(self, phi):
        out = []
        if phi >= len(self.PH):
            return out
        for upper, item in enumerate(self.PH[phi]):
            kind, n = item[0], int(item[1:])
            base = self.slot_addr(phi, upper)
            if kind == "x":
                srd, vo, so = self.sX, [self.vDX + i for i in range(self.IPW)], n * 256
            elif kind == "w":
                srd, vo, so = self.sWQ, [self.vDW + i for i in range(self.IPW)], n * 32 * 8192
            elif kind == "K":
                srd, vo, so = self.sK, [self.vDK + i for i in range(self.IPW)], n * 16384
            elif kind == "V":
                srd, vo, so = self.sV, [self.vDV] * self.IPW, n * 16384
            else:
                srd, vo, so = self.sWO, [self.vDO + i for i in range(self.IPW)], (n % 4) * 65536 + (n // 4) * 256
            st = self.sT + upper
            for i in range(self.IPW):
                g = []
                if i == 0:
                    g.append(f"s_add_u32 m0, s{self.sM0}, {base}")
                    g.append(f"s_mov_b32 s{st}, {so}")
                off = f" offset:{i*1024}" if i else ""
                g.append(f"buffer_load_dwordx4 v{vo[i]}, s[{srd}:{srd+3}], s{st} offen{off} lds")
                out.append((phi, g))
        return out

    def emit_dma(self, grp):
        phi, g = grp
        for ln in g:
            self.e(ln)
        self.vm.push(("dma", phi))

    def barrier(self, phi):
        self.vm.need(lambda t: t[0] == "dma" and t[1] <= phi)
        self.lg.need(lambda t: t[0] <= phi - 1)
        self.e("s_barrier")

    def run_slots(self, slots, open_phase, dma_after, pre_reads=0, tail_barrier=None):
        n = len(slots)
        DMAX, BOFF, RPG = self.o["DMAX"], self.o["BOFF"], self.o["RPG"]
        bar_at = {}
        cur = open_phase
        prev_first = -10
        for j, s in enumerate(slots):
            if s["phase"] > cur:
                g = max(j - BOFF, prev_first + 0, 0)
                bar_at.setdefault(g, []).append(s["phase"])
                cur = s["phase"]
                prev_first = j
        if tail_barrier is not None:
            bar_at.setdefault(max(n - BOFF, prev_first), []).append(tail_barrier[0])
        opened = open_phase
        nxt = pre_reads
        pend_dma = list(self.pending_dma)
        self.pending_dma = []

        def issue_reads(g, limit):
            nonlocal nxt
            k = 0
            while nxt < n and k < limit and nxt - g <= DMAX and slots[nxt]["phase"] <= opened:
                for tag, text in slots[nxt]["reads"]:
                    self.e(text)
                    self.lg.push(tag)
                nxt += 1
                k += 1

        issue_reads(-1, 4)
        bars = sorted(bar_at)
        for g, s in enumerate(slots):
            assert nxt > g, (g, nxt)
            ms = s["mfma"]
            fill = list(s["fill"])
            per = -(-len(fill) // len(ms))
            nb = [b for b in bars if b >= g]
            left = (nb[0] - g) if nb else (n - 1 - g)
            ndma = len(pend_dma) if left <= 0 else -(-len(pend_dma) // (left + 0)) if left <= 2 else \
                -(-len(pend_dma) // min(left, max(1, len(pend_dma) * 3))) if pend_dma else 0
            if pend_dma and left > 2:
                stride = max(1, left // len(pend_dma))
                ndma = -(-len(pend_dma) // left) if (g % stride == 0 or left <= len(pend_dma)) else 0
            for i, (text, tags) in enumerate(ms):
                self.lg.need(lambda t: t in tags)
                self.e(text)
                if i == 0:
                    issue_reads(g, RPG)
                for f in fill[i * per:(i + 1) * per]:
                    self.emit_fill(f)
                if i == 0:
                    for _ in range(ndma):
                        self.emit_dma(pend_dma.pop(0))
            if g in bar_at:
                for phi in bar_at[g]:
                    while nxt < n and slots[nxt]["phase"] <= opened:
                        assert nxt - g <= self.NFB - 1, "frag buffer overrun"
                        for tag, text in slots[nxt]["reads"]:
                            self.e(text)
                            self.lg.push(tag)
                        nxt += 1
                    while pend_dma:
                        self.emit_dma(pend_dma.pop(0))
                    if tail_barrier is not None and phi == tail_barrier[0]:
                        tail_barrier[1]()
                    self.barrier(phi)
                    opened = phi
                    if tail_barrier is not None and phi == tail_barrier[0]:
                        tail_barrier[2]()
                    pend_dma += dma_after(phi)
                    issue_reads(g, RPG)
        self.pending_dma = pend_dma

    def emit_fill(self, f):
        if callable(f):
            f()
        else:
            self.e(f)

    def fb(self):
        b = self.aF + 4 * (self.fbi % self.NFB)
        self.fbi += 1
        return b

    def setup(self):
        e, NQ, NW, IPW = self.e, self.NQ, self.NW, self.IPW
        e("s_cmp_ge_u32 s2, 256")
        e("s_cbranch_scc1 L_end")
        if self.stamps:
            e("s_memrealtime s[70:71]")
        e("s_load_dwordx16 s[4:19], s[0:1], 0")
        e("v_lshrrev_b32 v1, 6, v0")
        e("v_and_b32 v0, 63, v0")
        e(f"v_readfirstlane_b32 s{self.sW}, v1")
        e("s_and_b32 s60, s2, 7")
        e("s_lshr_b32 s61, s2, 4")
        e("s_bfe_u32 s62, s2, 0x10003")
        e("s_lshl_b32 s63, s60, 1")
        e("s_add_u32 s63, s63, s62")
        e("s_lshl_b32 s64, s61, 3")
        e("s_add_u32 s64, s64, s60")
        e(f"s_mul_i32 s{self.sM0}, s{self.sW}, {IPW*1024}")
        e("v_lshrrev_b32 v2, 4, v0")
        e("v_and_b32 v3, 15, v0")
        e("v_lshrrev_b32 v4, 5, v0")
        e("v_and_b32 v5, 31, v0")
        if IPW == 2:
            e(f"s_and_b32 s65, s{self.sW}, 1")
            e("s_lshl_b32 s65, s65, 3")
            e("v_or_b32 v6, s65, v2")
        else:
            e("v_mov_b32 v6, v2")
        e("v_xor_b32 v6, v6, v3")
        e("v_lshlrev_b32 v6, 4, v6")
        e(f"s_mul_i32 s65, s{self.sW}, {4*IPW}")
        e("v_add_u32 v7, s65, v2")
        e(f"v_lshl_add_u32 v{self.vDX}, v7, 10, v6")
        for i in range(1, IPW):
            e(f"v_xor_b32 v8, {i<<6}, v{self.vDX}")
            e(f"v_add_u32 v{self.vDX+i}, {i*3072}, v8")
        e(f"s_mul_i32 s65, s{self.sW}, {2*IPW}")
        e("v_add_u32 v8, s65, v4")
        e("v_lshlrev_b32 v9, 2, v4")
        e("v_xor_b32 v9, v9, v5")
        e("v_lshlrev_b32 v9, 4, v9")
        e(f"v_lshl_add_u32 v{self.vDW}, v8, 13, v9")
        for i in range(1, IPW):
            if i & 1:
                e(f"v_xor_b32 v8, 128, v{self.vDW}")
                e(f"v_add_u32 v{self.vDW+i}, {i*(16384-1024)}, v8")
            else:
                e(f"v_add_u32 v{self.vDW+i}, {i*(16384-1024)}, v{self.vDW}")
        e("s_waitcnt lgkmcnt(0)")

        def srd(s, lo, off_s, shift, nrec):
            e(f"s_lshl_b32 s66, s{off_s}, {shift}")
            e(f"s_add_u32 s{s}, s{lo}, s66")
            e(f"s_addc_u32 s{s+1}, s{lo+1}, 0")
            e(f"s_mov_b32 s{s+2}, {nrec}")
            e(f"s_mov_b32 s{s+3}, 0x20000")
        srd(self.sX, 4, 61, 16, 65536)
        srd(self.sWQ, 10, 63, 9, 511 * 8192 + 512)
        for phi in range(4):
            for grp in self.dma_list(phi):
                self.emit_dma(grp)
        srd(self.sK, 6, 64, 18, 262144)
        srd(self.sV, 8, 64, 18, 262144)
        srd(self.sWO, 12, 63, 18, 262144)
        e("s_lshl_b32 s66, s61, 20")
        e("s_lshl_b32 s67, s63, 12")
        e("s_add_u32 s66, s66, s67")
        e(f"s_add_u32 s{self.sWS}, s18, s66")
        e(f"s_addc_u32 s{self.sWS+1}, s19, 0")
        e(f"s_mov_b32 s{self.sWS+2}, {15*65536+4096}")
        e(f"s_mov_b32 s{self.sWS+3}, 0x20000")
        e(f"v_lshl_add_u32 v{self.vDK}, v7, 8, v6")
        for i in range(1, IPW):
            e(f"v_xor_b32 v{self.vDK+i}, {i<<6}, v{self.vDK}")
        e("v_lshlrev_b32 v8, 2, v2")
        e("v_xor_b32 v8, v8, v3")
        e("v_lshlrev_b32 v8, 4, v8")
        e(f"v_lshl_add_u32 v{self.vDV}, v7, 8, v8")
        e(f"v_lshl_add_u32 v{self.vDO}, v7, 10, v8")
        for i in range(1, IPW):
            e(f"v_add_u32 v{self.vDO+i}, {i*3072}, v{self.vDO}")
        e(f"s_and_b32 s60, s{self.sW}, 1")
        if NQ == 1:
            e(f"s_bfe_u32 s61, s{self.sW}, 0x10001")
            e(f"s_lshr_b32 s62, s{self.sW}, 2")
        else:
            e("s_mov_b32 s61, 0")
            e(f"s_lshr_b32 s62, s{self.sW}, 1")
        e("v_bfe_u32 v9, v0, 2, 2")
        e("v_bfe_u32 v10, v0, 4, 1")
        e("v_and_b32 v11, 1, v0")
        e("v_bfe_u32 v12, v0, 1, 1")
        e("v_xor_b32 v13, v4, v3")
        e("v_lshlrev_b32 v13, 4, v13")
        e("v_lshl_add_u32 v13, v5, 8, v13")
        e("s_lshl_b32 s65, s61, 13")
        e("v_add_u32 v14, s65, v13")
        for s in range(8):
            e(f"v_xor_b32 v{self.vXA+s}, {s*32}, v14")
        e("s_lshl_b32 s65, s60, 13")
        e("v_add_u32 v14, s65, v13")
        for s in range(8):
            e(f"v_xor_b32 v{self.vKA+s}, {s*32}, v14")
        e("v_lshl_add_u32 v13, v4, 3, v9")
        e("v_lshlrev_b32 v13, 9, v13")
        e("v_lshl_add_u32 v13, v12, 3, v13")
        e("v_lshl_add_u32 v14, v10, 1, v11")
        e("v_lshl_add_u32 v14, v9, 2, v14")
        e("s_lshl_b32 s65, s62, 4")
        e("s_lshl_b32 s66, s60, 3")
        e("s_add_u32 s65, s65, s66")
        e("v_xor_b32 v14, s65, v14")
        e(f"v_lshl_add_u32 v{self.vWA}, v14, 4, v13")
        e(f"v_xor_b32 v{self.vWA+1}, 64, v{self.vWA}")
        e(f"v_add_u32 v{self.vWA+2}, 65536, v{self.vWA}")
        e(f"v_add_u32 v{self.vWA+3}, 65536, v{self.vWA+1}")
        e("v_lshl_add_u32 v13, v4, 2, v9")
        e("v_lshlrev_b32 v13, 8, v13")
        e("v_lshl_add_u32 v14, v10, 1, v12")
        e("v_lshl_add_u32 v14, v9, 2, v14")
        e("s_lshl_b32 s65, s60, 3")
        e("v_xor_b32 v14, s65, v14")
        e("v_lshl_add_u32 v14, v14, 4, v13")
        e("v_lshl_add_u32 v14, v11, 3, v14")
        e("s_lshl_b32 s65, s60, 13")
        e("s_add_u32 s65, s65, 65536")
        e(f"v_add_u32 v{self.vVA}, s65, v14")
        for d in range(1, 4):
            e(f"v_xor_b32 v{self.vVA+d}, {d*64}, v{self.vVA}")
        e("v_lshl_add_u32 v14, v11, 1, v10")
        e("v_lshl_add_u32 v14, v9, 2, v14")
        e("s_lshl_b32 s65, s62, 3")
        e("s_lshl_b32 s66, s60, 2")
        e("s_add_u32 s65, s65, s66")
        e("v_xor_b32 v14, s65, v14")
        e("v_lshl_add_u32 v14, v14, 4, v13")
        e(f"v_lshl_add_u32 v{self.vOA}, v12, 3, v14")
        e(f"v_add_u32 v{self.vOA+1}, 65536, v{self.vOA}")
        e("s_lshl_b32 s65, s65, 14")
        e("s_lshl_b32 s66, s61, 11")
        e("s_add_u32 s65, s65, s66")
        e(f"v_lshl_add_u32 v{self.vST}, v0, 4, s65")
        OB = 4096 * NQ
        e("v_lshlrev_b32 v15, 4, v0")
        e(f"s_mul_i32 s65, s{self.sW}, {OB}")
        e(f"s_add_u32 s66, s65, {self.EX}")
        e("v_add_u32 v1, s66, v15")
        e(f"v_xor_b32 v3, {OB}, v1")
        e(f"v_and_b32 v2, {~OB & 0xffffffff}, v1")
        e(f"s_and_b32 s66, s65, 16383")
        e(f"s_lshr_b32 s67, s65, 14")
        e("s_lshl_b32 s67, s67, 16")
        e("s_add_u32 s66, s66, s67")
        e(f"s_add_u32 s66, s66, {self.slot_addr(25, 0)}")
        e("v_add_u32 v4, s66, v15")
        e(f"v_xor_b32 v5, {OB}, v4")
        e("s_lshl_b32 s66, s61, 13")
        e(f"s_add_u32 s66, s66, {self.EX}")
        e("v_add_u32 v6, s66, v15")
        for q in range(NQ):
            e(f"v_mov_b32 v{self.vL+q}, 0")

    def qproj(self):
        NQ, e = self.NQ, self.e
        slots = []
        for phi in range(10):
            first = len(slots)
            xr = []
            for upper, item in enumerate(self.PH[phi]):
                kind, n = item[0], int(item[1:])
                base = self.slot_addr(phi, upper)
                if kind == "x":
                    for s in range(8):
                        for q in range(NQ):
                            a = (n % 2) * 32 * NQ + q * 32 + 4 * s
                            xr.append(((phi, "x", n, s, q),
                                       f"ds_read_b128 a[{a}:{a+3}], v{self.vXA+s} offset:{base+q*8192}"))
                    self.xphase[n] = phi
                    continue
                for ks in range(2):
                    for c in range(2):
                        fb = self.fb()
                        va = self.vWA + c + 2 * upper
                        o = base % 65536 + ks * 16 * 512
                        tg = [(phi, "w", n, ks, c, g) for g in range(2)]
                        reads = [(tg[g], f"ds_read_b64_tr_b16 a[{fb+2*g}:{fb+2*g+1}], v{va} offset:{o+g*4*512}")
                                 for g in range(2)]
                        ms = []
                        ch, s = n // 4, 2 * (n % 4) + ks
                        for q in range(NQ):
                            d = self.S[c] + 16 * q
                            a = (ch % 2) * 32 * NQ + q * 32 + 4 * s
                            C = "0" if (n == 0 and ks == 0) else f"v[{d}:{d+15}]"
                            ms.append((f"v_mfma_f32_32x32x16_bf16 v[{d}:{d+15}], a[{fb}:{fb+3}], a[{a}:{a+3}], {C}",
                                       tg + [(self.xphase[ch], "x", ch, s, q)]))
                        slots.append(dict(phase=phi, reads=reads, mfma=ms, fill=[]))
            if xr:
                k = len(slots) - first
                per = len(xr) // k
                for i in range(k):
                    slots[first + i]["reads"] = xr[i * per:(i + 1) * per] + slots[first + i]["reads"]
        for s in range(8):
            slots[-8 + s]["fill"].append(f"v_add_u32 v{self.vXA+s}, 65536, v{self.vKA+s}")
        self.barrier(0)
        self.run_slots(slots, 0, lambda phi: self.dma_list(phi + 3))
        sc = math.log2(math.e) / math.sqrt(128.0)
        e(f"s_mov_b32 s65, {f32(sc)}")
        for d in range(4):
            e(f"v_subrev_u32 v{self.vWA+d}, 65536, v{self.vVA+d}")
        for c in range(2):
            for q in range(NQ):
                d = self.S[c] + 16 * q
                for i in range(16):
                    e(f"v_mul_f32 v{d+i}, s65, v{d+i}")
                pk = self.P[0] + (c * NQ + q) * 8
                for i in range(8):
                    e(f"v_cvt_pk_bf16_f32 v{pk+i}, v{d+2*i}, v{d+2*i+1}")
                for ee in range(2):
                    e(f"ds_write_b128 v1, v[{pk+4*ee}:{pk+4*ee+3}] offset:{(q*4+2*c+ee)*1024}")
                    self.lg.push((9, "qw"))

    def k_slot(self, t, s, phi, upper, first_c):
        NQ = self.NQ
        fb = self.fb()
        va = (self.vXA if upper else self.vKA) + s
        tag = (phi, "k", t, s)
        reads = [(tag, f"ds_read_b128 a[{fb}:{fb+3}], v{va} offset:{self.slot_addr(phi, upper) % 65536}")]
        ms = []
        for q in range(NQ):
            d = self.S[t % 2] + 16 * q
            if s == 0:
                C = "0" if first_c else f"v[{self.C+16*q}:{self.C+16*q+15}]"
            else:
                C = f"v[{d}:{d+15}]"
            b = self.aQ + 32 * q + 4 * s
            ms.append((f"v_mfma_f32_32x32x16_bf16 v[{d}:{d+15}], a[{fb}:{fb+3}], a[{b}:{b+3}], {C}",
                       [tag, (10, "q", s, q)]))
        return dict(phase=phi, reads=reads, mfma=ms, fill=[])

    def v_slot(self, t, i, phi, upper):
        NQ = self.NQ
        u, d = i // 4, i % 4
        fb = self.fb()
        va = (self.vVA if upper else self.vWA) + d
        o = self.slot_addr(phi, upper) % 65536 + u * 16 * 256
        tg = [(phi, "v", t, i, g) for g in range(2)]
        reads = [(tg[g], f"ds_read_b64_tr_b16 a[{fb+2*g}:{fb+2*g+1}], v{va} offset:{o+g*8*256}") for g in range(2)]
        ms = []
        for q in range(NQ):
            if d < 2:
                r = self.OK + (d * NQ + q) * 16
                D = f"v[{r}:{r+15}]"
            else:
                r = self.aOS + ((d - 2) * NQ + q) * 16
                D = f"a[{r}:{r+15}]"
            C = "0" if (t == 0 and u == 0) else D
            b = self.P[t % 2] + 8 * q + 4 * u
            ms.append((f"v_mfma_f32_32x32x16_bf16 {D}, a[{fb}:{fb+3}], v[{b}:{b+3}], {C}", tg))
        return dict(phase=phi, reads=reads, mfma=ms, fill=[])

    def sm_ops(self, t, sub):
        NQ = self.NQ
        res = []
        for j in range(18):
            ops = []
            for q in range(NQ):
                r = self.S[t % 2] + 16 * q
                pw = self.P[t % 2] + 8 * q
                if sub and j < 16:
                    ops.append(f"v_sub_f32 v{r+j}, v{r+j}, v{self.vM+q}")
                jj = j - 1 if sub else j
                if 0 <= jj < 16:
                    ops.append(f"v_exp_f32 v{r+jj}, v{r+jj}")
                if 1 <= jj <= 16:
                    ops.append(f"v_add_f32 v{self.vL+q}, v{self.vL+q}, v{r+jj-1}")
                if jj >= 2 and jj % 2 == 0 and jj <= 16:
                    ops.append(f"v_cvt_pk_bf16_f32 v{pw+jj//2-1}, v{r+jj-2}, v{r+jj-1}")
            res.append(ops)
        return res

    def spread(self, slots, ops, lo=0):
        k = len(slots) - lo
        n = len(ops)
        for i in range(k):
            slots[lo + i]["fill"] += ops[i * n // k:(i + 1) * n // k]

    def attention(self):
        NQ, e = self.NQ, self.e
        OB = 4096 * NQ
        self.barrier(10)
        self.pending_dma += self.dma_list(13)
        slots = []
        s0 = [self.k_slot(0, s, 10, 0, True) for s in range(8)]
        for s in range(8):
            qr = []
            for q in range(NQ):
                b = self.aQ + 32 * q + 4 * s
                qr.append(((10, "q", s, q),
                           f"ds_read_b128 a[{b}:{b+3}], v2 offset:{(s>>2)*OB+(q*4+(s&3))*1024}"))
            s0[s]["reads"] = qr + s0[s]["reads"]
        slots += s0
        s1 = [self.k_slot(1, s, 10, 1, True) for s in range(8)]
        ops = []
        for q in range(NQ):
            r = self.S[0] + 16 * q
            m = self.vM + q
            ops.append(f"v_max3_f32 v{m}, v{r}, v{r+1}, v{r+2}")
            for i in range(3, 15, 2):
                ops.append(f"v_max3_f32 v{m}, v{m}, v{r+i}, v{r+i+1}")
            ops.append(f"v_max_f32 v{m}, v{m}, v{r+15}")
            ops.append(f"v_mov_b32 v7, v{m}")
            ops.append(f"v_permlane32_swap_b32 v7, v{m}")
            ops.append(f"v_max_f32 v{m}, v{m}, v7")
        for x in self.sm_ops(0, True):
            ops += x
        for q in range(NQ):
            for i in range(16):
                ops.append(f"v_sub_f32 v{self.C+16*q+i}, 0, v{self.vM+q}")
        self.spread(s1, ops, 2)
        slots += s1
        order = "QPQPQQPQQPQQPPPP"
        for t in range(1, 15):
            phi = 10 + t
            it = []
            qi = pi = 0
            for c in order:
                if c == "Q":
                    it.append(self.k_slot(t + 1, qi, phi, 0, False))
                    qi += 1
                else:
                    it.append(self.v_slot(t - 1, pi, phi, 1))
                    pi += 1
            ops = []
            for x in self.sm_ops(t, t == 1):
                ops += x
            self.spread(it, ops, 1 if t == 1 else 0)
            slots += it
        it = [self.v_slot(14, i, 25, 0) for i in range(8)]
        ops = []
        for x in self.sm_ops(15, False):
            ops += x
        self.spread(it, ops)
        slots += it
        it = [self.v_slot(15, i, 25, 1) for i in range(8)]
        ops = []
        for q in range(NQ):
            l = self.vL + q
            ops.append(f"v_mov_b32 v7, v{l}")
            ops.append(f"v_permlane32_swap_b32 v7, v{l}")
            ops.append(f"v_add_f32 v{l}, v{l}, v7")
        ops.append("v_lshlrev_b32 v8, 3, v0")
        ops.append("v_sub_u32 v9, v3, v8")
        ops.append("v_sub_u32 v8, v1, v8")
        for q in range(NQ):
            ops.append(f"v_mov_b32 v10, v{self.vM+q}")
            ops.append(f"v_mov_b32 v11, v{self.vL+q}")

            def wr(q=q):
                e(f"ds_write_b64 v9, v[10:11] offset:{q*512}")
                self.lg.push((25, "ml"))
            ops.append(wr)
        self.spread(it[:4], ops)
        slots += it

        def after26():
            for q in range(NQ):
                e(f"ds_read_b64 v[{10+2*q}:{11+2*q}], v8 offset:{q*512}")
                self.lg.push((26, "ml", q))
        self.run_slots(slots, 10, lambda phi: self.dma_list(phi + 3) if phi < 26 else [],
                       tail_barrier=(26, lambda: None, after26))
        self.lg.need(lambda t: t[:2] == (26, "ml"))
        fa, fbb = self.S[0], self.S[0] + 4
        for q in range(NQ):
            m, l, mo, lo = self.vM + q, self.vL + q, 10 + 2 * q, 11 + 2 * q
            e(f"v_max_f32 v7, v{m}, v{mo}")
            e(f"v_sub_f32 v{fa+q}, v{m}, v7")
            e(f"v_sub_f32 v{fbb+q}, v{mo}, v7")
            e(f"v_exp_f32 v{fa+q}, v{fa+q}")
            e(f"v_exp_f32 v{fbb+q}, v{fbb+q}")
            e(f"v_mul_f32 v7, v{fa+q}, v{l}")
            e(f"v_fma_f32 v7, v{fbb+q}, v{lo}, v7")
            e("v_rcp_f32 v7, v7")
            e(f"v_mul_f32 v{fa+q}, v{fa+q}, v7")
            e(f"v_mul_f32 v{fbb+q}, v{fbb+q}, v7")
        for d in range(2):
            for q in range(NQ):
                for k in range(4):
                    r = self.aOS + (d * NQ + q) * 16 + 4 * k
                    e(f"ds_write_b128 v{1 if d == 0 else 4}, a[{r}:{r+3}] offset:{(q*4+k)*1024}")
                    self.lg.push((26, "ow"))
        for d in range(2):
            for q in range(NQ):
                r = self.OK + (d * NQ + q) * 16
                for i in range(16):
                    e(f"v_mul_f32 v{r+i}, v{fa+q}, v{r+i}")
        self.lg.drain()
        e("s_barrier")
        rx = self.S[1]
        for d in range(2):
            for q in range(NQ):
                for k in range(4):
                    r = rx + (d * NQ + q) * 16 + 4 * k
                    e(f"ds_read_b128 v[{r}:{r+3}], v{3 if d == 0 else 5} offset:{(q*4+k)*1024}")
                    self.lg.push((26, "or", d, q, k))
        for d in range(2):
            for q in range(NQ):
                r = self.OK + (d * NQ + q) * 16
                s = rx + (d * NQ + q) * 16
                pk = self.P[0] + (d * NQ + q) * 8
                for k in range(4):
                    self.lg.need(lambda t: t == (26, "or", d, q, k))
                    for i in range(4 * k, 4 * k + 4):
                        e(f"v_fma_f32 v{r+i}, v{fbb+q}, v{s+i}, v{r+i}")
                    for i in range(2 * k, 2 * k + 2):
                        e(f"v_cvt_pk_bf16_f32 v{pk+i}, v{r+2*i}, v{r+2*i+1}")
                if d == 0 and q == NQ - 1:
                    pass
        for d in range(2):
            for q in range(NQ):
                pk = self.P[0] + (d * NQ + q) * 8
                for ee in range(2):
                    e(f"ds_write_b128 v3, v[{pk+4*ee}:{pk+4*ee+3}] offset:{(q*4+2*d+ee)*1024}")
                    self.lg.push((26, "of"))
        self.lg.drain()
        e("s_barrier")
        self.pending_dma += self.dma_list(29)

    def outproj(self):
        NQ, e = self.NQ, self.e
        OB = 4096 * NQ
        slots = []
        for n in range(16):
            phi, upper = 26 + n // 2, n % 2
            blk, ks4 = n // 4, n % 4
            for k in range(4):
                f = 4 * ks4 + k
                fb = self.fb()
                o = self.slot_addr(phi, upper) % 65536 + k * 16 * 256
                tg = [(phi, "o", n, k, g) for g in range(2)]
                reads = [(tg[g], f"ds_read_b64_tr_b16 a[{fb+2*g}:{fb+2*g+1}], v{self.vOA+upper} offset:{o+g*8*256}")
                         for g in range(2)]
                ms = []
                for q in range(NQ):
                    a = (q * 16 + f) * 4
                    if blk == 0:
                        hf, pf = f >> 3, (f >> 2) & 1
                        wsrc = (4 * hf + (1 - pf)) if NQ == 1 else (2 * hf + 1 - pf)
                        reads.insert(0, ((phi, "of", f, q),
                                         f"ds_read_b128 a[{a}:{a+3}], v6 offset:{wsrc*OB+(q*4+(f&3))*1024}"))
                    d = self.S[blk % 2] + 16 * q
                    C = "0" if f == 0 else f"v[{d}:{d+15}]"
                    ms.append((f"v_mfma_f32_32x32x16_bf16 v[{d}:{d+15}], a[{fb}:{fb+3}], a[{a}:{a+3}], {C}",
                               tg + [(26 + f // 8, "of", f, q)]))
                slots.append(dict(phase=phi, reads=reads, mfma=ms, fill=[]))

        def store_ops(blk):
            ops = []
            ops.append(f"s_mov_b32 s{self.sT+2}, {blk*4*65536}")
            for q in range(NQ):
                d = self.S[blk % 2] + 16 * q
                pk = self.P[blk % 2] + 8 * q
                for k in range(2):
                    for i in range(4 * k, 4 * k + 4):
                        ops.append(f"v_cvt_pk_bf16_f32 v{pk+i}, v{d+2*i}, v{d+2*i+1}")

                    def st(q=q, k=k, pk=pk):
                        e(f"buffer_store_dwordx4 v[{pk+4*k}:{pk+4*k+3}], v{self.vST}, s[{self.sWS}:{self.sWS+3}], "
                          f"s{self.sT+2} offen offset:{q*2048+k*1024} {self.o['store_flags']}")
                        self.vm.push(("st", blk))
                    ops.append(st)
            return ops
        for blk in range(3):
            self.spread(slots[16 * (blk + 1) + 3:16 * (blk + 1) + 9], store_ops(blk))
        self.run_slots(slots, 26, lambda phi: self.dma_list(phi + 3))
        for op in store_ops(3):
            self.emit_fill(op)

    def dump_regs(self, kind):
        e, NQ = self.e, self.NQ
        self.lg.drain()
        e("s_add_u32 s44, s18, 0x2000000")
        e("s_addc_u32 s45, s19, 0")
        e("s_mov_b32 s46, 0x4000000")
        e("s_mov_b32 s47, 0x20000")
        n = (8 if kind == "q" else 16) * NQ
        base = self.aQ if kind == "q" else 0
        e(f"s_mul_i32 s65, s2, {self.NW}")
        e(f"s_add_u32 s65, s65, s{self.sW}")
        e(f"s_mul_i32 s65, s65, {n*1024}")
        e("v_lshlrev_b32 v15, 4, v0")
        for i in range(n):
            e(f"s_add_u32 s66, s65, {i*1024}")
            e(f"buffer_store_dwordx4 a[{base+4*i}:{base+4*i+3}], v15, s[44:47], s66 offen")
        e("s_waitcnt vmcnt(0)")

    def main_kernel(self):
        self.PH = self.phases()
        self.xphase = {}
        self.fbi = 0
        self.pending_dma = []
        self.setup()
        self.stamp()
        self.qproj()
        self.stamp()
        self.attention()
        if self.dump == "q":
            self.dump_regs("q")
        self.stamp()
        self.outproj()
        if self.dump == "o":
            self.dump_regs("o")
        self.stamp()
        self.e("s_waitcnt vmcnt(0)")
        self.stamp()
        if self.stamps:
            e = self.e
            e("s_add_u32 s44, s18, 0x2000000")
            e("s_addc_u32 s45, s19, 0")
            e("s_mov_b32 s46, 0x4000000")
            e("s_mov_b32 s47, 0x20000")
            e(f"s_mul_i32 s65, s2, {self.NW}")
            e(f"s_add_u32 s65, s65, s{self.sW}")
            e("s_mul_i32 s65, s65, 64")
            e("v_mov_b32 v15, 0")
            e("s_getreg_b32 s66, hwreg(HW_REG_XCC_ID)")
            for i in range(15):
                e(f"v_mov_b32 v{16+i}, s{70+2*i}" if i <= self.nstamp else f"v_mov_b32 v{16+i}, 0")
            e("v_mov_b32 v31, s66")
            e("s_mov_b64 exec, 1")
            for i in range(4):
                e(f"buffer_store_dwordx4 v[{16+4*i}:{19+4*i}], v15, s[44:47], s65 offen offset:{16*i}")
            e("s_waitcnt vmcnt(0)")
        self.e("L_end:")
        self.e("s_endpgm")
        lines, added = hazard_pass(self.L)
        return lines, added


def reduce_kernel():
    L = []
    e = lambda s: L.append(s if s.endswith(":") else "    " + s)
    e("s_cmp_ge_u32 s2, 256")
    e("s_cbranch_scc1 R_end")
    e("s_load_dwordx2 s[4:5], s[0:1], 40")
    e("s_load_dwordx2 s[6:7], s[0:1], 56")
    e("v_lshlrev_b32 v1, 4, v0")
    e("v_and_b32 v2, 31, v0")
    e("v_bfe_u32 v3, v0, 7, 1")
    e("v_lshl_add_u32 v2, v3, 5, v2")
    e("v_lshlrev_b32 v2, 10, v2")
    e("v_bfe_u32 v3, v0, 5, 1")
    e("v_lshl_add_u32 v2, v3, 5, v2")
    e("v_bfe_u32 v3, v0, 6, 1")
    e("v_lshl_add_u32 v2, v3, 4, v2")
    e("s_lshr_b32 s16, s2, 4")
    e("s_lshl_b32 s16, s16, 16")
    e("s_and_b32 s17, s2, 15")
    e("s_lshl_b32 s17, s17, 6")
    e("s_add_u32 s16, s16, s17")
    e("s_lshl_b32 s17, s2, 16")
    e("s_waitcnt lgkmcnt(0)")
    e("s_add_u32 s8, s6, s17")
    e("s_addc_u32 s9, s7, 0")
    e("s_mov_b32 s10, 65536")
    e("s_mov_b32 s11, 0x20000")
    e("s_mov_b32 s12, s4")
    e("s_mov_b32 s13, s5")
    e("s_mov_b32 s14, 1048576")
    e("s_mov_b32 s15, 0x20000")
    for i in range(16):
        e(f"s_mov_b32 s18, {i*4096}")
        e(f"buffer_load_dwordx4 v[{16+4*i}:{19+4*i}], v1, s[8:11], s18 offen")
    e("s_mov_b32 s19, 0xffff0000")
    for i in range(16):
        e(f"s_waitcnt vmcnt({15-i})")
        for k in range(4):
            r = 16 + 4 * i + k
            if i == 0:
                e(f"v_lshlrev_b32 v{4+2*k}, 16, v{r}")
                e(f"v_and_b32 v{5+2*k}, s19, v{r}")
            else:
                e(f"v_lshlrev_b32 v12, 16, v{r}")
                e(f"v_and_b32 v13, s19, v{r}")
                e(f"v_add_f32 v{4+2*k}, v{4+2*k}, v12")
                e(f"v_add_f32 v{5+2*k}, v{5+2*k}, v13")
    for k in range(4):
        e(f"v_cvt_pk_bf16_f32 v{12+k}, v{4+2*k}, v{5+2*k}")
    e("buffer_store_dwordx4 v[12:15], v2, s[12:15], s16 offen")
    e("R_end:")
    e("s_endpgm")
    return hazard_pass(L)[0]


def kd(name, vgpr, accum, sgpr=102):
    return f""".amdhsa_kernel {name}
  .amdhsa_next_free_vgpr {vgpr}
  .amdhsa_next_free_sgpr {sgpr}
  .amdhsa_accum_offset {accum}
  .amdhsa_group_segment_fixed_size 0
  .amdhsa_kernarg_size 64
  .amdhsa_user_sgpr_count 2
  .amdhsa_user_sgpr_kernarg_segment_ptr 1
  .amdhsa_system_sgpr_workgroup_id_x 1
.end_amdhsa_kernel
"""


def build(NQ=1, dump=None, stamps=False, opts=None):
    g = Gen(NQ, dump, stamps, opts)
    body, added = g.main_kernel()
    txt = HEADER
    txt += f"; @launch kernel={KN} grid=(256,1,1) block=({g.NW*64},1,1) lds=163840\n"
    txt += f"; @launch kernel={RN} grid=(256,1,1) block=(256,1,1) lds=0\n"
    txt += '.amdgcn_target "amdgcn-amd-amdhsa--gfx950"\n.text\n'
    txt += f".globl {KN}\n.p2align 8\n.type {KN},@function\n{KN}:\n" + "\n".join(body) + "\n"
    txt += f".globl {RN}\n.p2align 8\n.type {RN},@function\n{RN}:\n" + "\n".join(reduce_kernel()) + "\n"
    txt += '.section .rodata,"a"\n.p2align 6\n' + kd(KN, 256 * NQ, g.ACC) + ".p2align 6\n" + kd(RN, 80, 80, 32)
    return txt, added


if __name__ == "__main__":
    import argparse
    ap = argparse.ArgumentParser()
    ap.add_argument("out")
    ap.add_argument("--nq", type=int, default=1)
    ap.add_argument("--dump")
    ap.add_argument("--stamps", action="store_true")
    ap.add_argument("--opt", action="append", default=[])
    a = ap.parse_args()
    opts = {}
    for o in a.opt:
        k, v = o.split("=")
        opts[k] = int(v) if v.lstrip("-").isdigit() else v
    txt, added = build(a.nq, a.dump, a.stamps, opts)
    open(a.out, "w").write(txt)
    print("wrote", a.out, "lines", txt.count("\n"), "nop states added", added)
```

```python
import math
import struct
from asmlib import hazard_pass, Queue

KN = "standalone__gqa_block_cached__near_ridge_kernel"
HEADER = """; Kernarg layout for this problem (64 bytes, ptrs only, base s[0:1]):
;   offset   0: d_in[0] x  shape=(16, 64, 512) dtype=bfloat16
;   offset   8: d_in[1] k_cache  shape=(16, 8, 1024, 128) dtype=bfloat16
;   offset  16: d_in[2] v_cache  shape=(16, 8, 1024, 128) dtype=bfloat16
;   offset  24: d_in[3] wq  shape=(512, 4096) dtype=bfloat16
;   offset  32: d_in[4] wo  shape=(4096, 512) dtype=bfloat16
;   offset  40: d_out     shape=(16, 64, 512) dtype=bfloat16
"""


def f32(x):
    return "0x%08x" % struct.unpack("<I", struct.pack("<f", x))[0]


MF = "v_mfma_f32_16x16x32_bf16"


def vr(a, n=4):
    return f"v[{a}:{a+n-1}]"


def ar(a, n=4):
    return f"a[{a}:{a+n-1}]"


class Gen:
    def __init__(self, stamps=0, opts=None):
        self.stamps = stamps
        self.o = dict(DMAX=10, FLD=6, RPG=2, WG=4, kv_flags="nt", w_flags="nt", o_flags="", x_flags="", lead=0, prio=1, d2=3,
                      thresh=2.0 ** 60, ackdist=60)
        self.o.update(opts or {})
        self.L = []
        self.lg = Queue("lgkmcnt", 15, self.e)
        self.vm = Queue("vmcnt", 63, self.e)
        self.nstamp = 0
        self.stamp_names = ["start"]
        self.vKA, self.vXA = 8, 12
        self.vWA = 16
        self.vVA, self.vOA = 16, 24
        self.vST, self.vEXW, self.vEXR, self.vFA = 32, 33, 34, 35
        self.vM, self.vMP = 36, 38
        self.vS1, self.vS2 = 40, 41
        self.vT = 42
        self.ONE = 44
        b = 48
        self.S = [b, b + 16]
        self.C = b + 32
        self.P = [b + 40, b + 48]
        self.LS = b + 56
        self.O = b + 64
        self.Q = b + 128
        self.ACC = b + 160
        self.NFB = 12
        self.sX, self.sWQ, self.sK, self.sV, self.sWO, self.sWS = 20, 24, 28, 32, 36, 40
        self.sDBG, self.sOUT, self.sRD, self.sIN = 80, 84, 88, 92
        self.sW = 3
        self.sT = 53
        self.sRW, self.sRX, self.sRO, self.sRS = 56, 57, 58, 59
        self.sMODE = 78
        self.sALL = 96
        self.EX = 131072
        self.FL = self.EX + 16384
        self.vF = 6
        self.vRA = 5
        self.PH = self.phases()
        self.NPH = len(self.PH)

    def e(self, s):
        self.L.append(s if s.startswith("    ") or s.endswith(":") else "    " + s)

    def slot_addr(self, phi, upper):
        return (65536 if upper else 0) + (phi % 4) * 16384

    def stamp(self, name="", level=1):
        if not self.stamps or level > self.stamps:
            return
        i = self.nstamp
        self.nstamp += 1
        assert i < 61
        self.stamp_names.append(name)
        self.lg.drain()
        self.e("s_memrealtime s[72:73]")
        self.e("s_memtime s[74:75]")
        self.e("s_waitcnt lgkmcnt(0)")
        self.e(f"v_writelane_b32 v{self.vS1}, s72, {i+1}")
        self.e(f"v_writelane_b32 v{self.vS2}, s74, {i+1}")

    def phases(self):
        ph = [("x0", "w0"), ("x1", "w1"), ("w2", "w3"), ("w4", "w5"), ("x2", "w6"), ("w7", "w8"),
              ("w9", "w10"), ("x3", "w11"), ("w12", "w13"), ("w14", "w15"), ("K0", None)]
        for j in range(1, 16):
            ph.append((f"K{j}", f"V{j-1}"))
        ph.append((None, "V15"))
        for blk in range(4):
            for a in range(2):
                ph.append((f"o{4*blk+a}", f"o{4*blk+a+2}"))
        return ph

    def prologue(self):
        e = self.e
        e("s_cmp_ge_u32 s2, 256")
        e("s_cbranch_scc1 L_end")
        if self.stamps:
            e("s_memrealtime s[70:71]")
        e("s_load_dwordx16 s[4:19], s[0:1], 0")
        e("v_lshrrev_b32 v1, 6, v0")
        e("v_and_b32 v0, 63, v0")
        e(f"v_readfirstlane_b32 s{self.sW}, v1")
        e("s_and_b32 s60, s2, 7")
        e("s_lshr_b32 s61, s2, 4")
        e("s_bfe_u32 s62, s2, 0x10003")
        e("s_lshl_b32 s63, s60, 1")
        e("s_add_u32 s63, s63, s62")
        e("s_lshl_b32 s64, s61, 3")
        e("s_add_u32 s64, s64, s60")
        e("s_and_b32 s68, s61, 3")
        e("s_lshr_b32 s69, s61, 2")
        e("s_and_b32 s76, s60, 3")
        e("s_lshl_b32 s77, s62, 1")
        e("s_xor_b32 s76, s76, s77")
        e("s_xor_b32 s77, s76, s69")
        e("s_lshl_b32 s76, s76, 2")
        e("s_xor_b32 s76, s76, s61")
        e(f"s_mov_b32 s{self.sMODE}, {0 if self.o.get('dbg_nodma') else 1}")
        e(f"s_cmp_ge_u32 s{self.sW}, 4")
        e("s_cbranch_scc1 L_loader")

    def srd(self, s, lo, off_s, shift, nrec):
        e = self.e
        if off_s is None:
            e(f"s_mov_b32 s{s}, s{lo}")
            e(f"s_mov_b32 s{s+1}, s{lo+1}")
        else:
            e(f"s_lshl_b32 s66, s{off_s}, {shift}")
            e(f"s_add_u32 s{s}, s{lo}, s66")
            e(f"s_addc_u32 s{s+1}, s{lo+1}, 0")
        e(f"s_mov_b32 s{s+2}, {nrec}")
        e(f"s_mov_b32 s{s+3}, 0x20000")

    def tail_srds(self):
        self.srd(self.sDBG, 16, None, 0, 256)
        self.srd(self.sRD, 18, 61, 20, 1 << 20)
        self.srd(self.sOUT, 14, 61, 16, 65536)
        e = self.e
        e("s_lshl_b32 s66, s61, 12")
        e("s_add_u32 s66, s66, 0x1000000")
        e(f"s_add_u32 s{self.sIN}, s18, s66")
        e(f"s_addc_u32 s{self.sIN+1}, s19, 0")
        e(f"s_mov_b32 s{self.sIN+2}, 4096")
        e(f"s_mov_b32 s{self.sIN+3}, 0x20000")

    def dma_half(self, phi, upper, hsel, base=None, so_reg=None):
        item = self.PH[phi][upper]
        if item is None:
            return
        if self.o.get("dbg_nodma") and 16 <= phi <= 26:
            return
        e = self.e
        kind, n = item[0], int(item[1:])
        if base is None:
            base = self.slot_addr(phi, upper)
        if kind == "x":
            srd, vo, so, rs, hs, fl = self.sX, [8, 9], n * 256, self.sRX, 32768, "x_flags"
        elif kind == "w":
            srd, vo, so, rs, hs, fl = self.sWQ, [10, 11], n * 32 * 8192, self.sRW, 16 * 8192, "w_flags"
        elif kind == "K":
            srd, vo, so, rs, hs, fl = self.sK, [12, 13], n * 16384, None, 8192, "kv_flags"
        elif kind == "V":
            srd, vo, so, rs, hs, fl = self.sV, [14, 15], n * 16384, None, 8192, "kv_flags"
        else:
            srd, vo, so, rs, hs, fl = self.sWO, [16, 17], (n % 4) * 65536 + (n // 4) * 256, self.sRO, 32768, "o_flags"
        fl = self.o[fl].replace("+", " ")
        st = self.sT
        if rs is None:
            e(f"s_add_u32 m0, s{46+hsel}, {base}")
            e(f"s_add_u32 s{st}, s{44+hsel}, {so if so_reg is None else so_reg}")
        else:
            e(f"s_add_u32 m0, s48, {base+hsel*8192}")
            e(f"s_xor_b32 s{st}, s{rs}, {so+hsel*hs}")
        e(f"buffer_load_dwordx4 v{vo[0]}, s[{srd}:{srd+3}], s{st} offen {fl} lds")
        e(f"buffer_load_dwordx4 v{vo[1]}, s[{srd}:{srd+3}], s{st} offen offset:1024 {fl} lds")
        self.vm.push(phi)
        self.vm.push(phi)

    def is_kv(self, phi):
        return 10 <= phi <= 26

    def dma_phase(self, phi, which=(0, 1)):
        if phi >= self.NPH:
            return
        for upper in range(2):
            for hsel in which:
                self.dma_half(phi, upper, hsel)

    def poll_flags(self, lab, row):
        e = self.e
        e("s_lshl_b32 s65, s63, 8")
        e(f"s_lshl_b32 s66, {row}, 6")
        e("s_add_u32 s65, s65, s66")
        e("v_and_b32 v2, 15, v0")
        e("v_lshlrev_b32 v2, 2, v2")
        e("s_mov_b32 s67, 0")
        e(f"{lab}:")
        e(f"buffer_load_dword v4, v2, s[{self.sIN}:{self.sIN+3}], s65 offen sc0 sc1")
        e("s_add_u32 s67, s67, 1")
        e("s_cmp_gt_u32 s67, 0x40000")
        e(f"s_cbranch_scc1 {lab}_done")
        e("s_waitcnt vmcnt(0)")
        e("v_cmp_eq_u32 vcc, 0, v4")
        e("s_nop 4")
        e(f"s_cbranch_vccnz {lab}")
        e(f"{lab}_done:")
        e("s_waitcnt vmcnt(0)")

    def loader(self):
        e = self.e
        self.vm.q = []
        e("L_loader:")
        e(f"s_sub_u32 s49, s{self.sW}, 4")
        e("s_lshl_b32 s48, s49, 11")
        e(f"s_lshl_b32 s{self.sRW}, s76, 18")
        e(f"s_lshl_b32 s{self.sRX}, s77, 8")
        e("v_lshrrev_b32 v2, 4, v0")
        e("v_and_b32 v3, 15, v0")
        e("v_lshrrev_b32 v4, 5, v0")
        e("v_and_b32 v5, 31, v0")
        e("s_and_b32 s65, s49, 1")
        e("s_lshl_b32 s65, s65, 3")
        e("v_or_b32 v6, s65, v2")
        e("v_xor_b32 v6, v6, v3")
        e("v_lshlrev_b32 v6, 4, v6")
        e("s_lshl_b32 s65, s49, 3")
        e("v_add_u32 v7, s65, v2")
        e("v_lshl_add_u32 v8, v7, 10, v6")
        e("v_xor_b32 v9, 64, v8")
        e("v_add_u32 v9, 3072, v9")
        e("s_lshl_b32 s65, s49, 2")
        e("v_add_u32 v18, s65, v4")
        e("s_lshr_b32 s65, s49, 1")
        e("s_lshl_b32 s65, s65, 3")
        e("v_lshl_or_b32 v19, v4, 1, s65")
        e("v_xor_b32 v19, v19, v5")
        e("v_lshlrev_b32 v19, 4, v19")
        e("v_lshl_add_u32 v10, v18, 13, v19")
        e("v_xor_b32 v11, 64, v10")
        e(f"v_add_u32 v11, {16384-1024}, v11")
        e("s_waitcnt lgkmcnt(0)")
        self.srd(self.sX, 4, 61, 16, 65536)
        self.srd(self.sWQ, 10, 63, 9, 511 * 8192 + 512)
        self.dma_phase(0)
        self.srd(self.sK, 6, 64, 18, 262144)
        self.srd(self.sV, 8, 64, 18, 262144)
        self.srd(self.sWO, 12, 63, 18, 262144)
        e("v_lshl_add_u32 v12, v7, 8, v6")
        e("v_xor_b32 v13, 64, v12")
        e("v_lshlrev_b32 v18, 1, v2")
        e("v_xor_b32 v18, v18, v3")
        e("v_lshlrev_b32 v18, 4, v18")
        e("v_lshl_add_u32 v14, v7, 8, v18")
        e("v_xor_b32 v15, 128, v14")
        e("v_lshl_add_u32 v16, v7, 10, v18")
        e("v_xor_b32 v17, 128, v16")
        e("v_add_u32 v17, 3072, v17")
        e("s_lshl_b32 s65, s69, 16")
        e("s_lshl_b32 s66, s68, 8")
        e(f"s_or_b32 s{self.sRO}, s65, s66")
        e("s_lshl_b32 s44, s62, 13")
        e("s_xor_b32 s45, s44, 8192")
        e("s_add_u32 s46, s44, s48")
        e("s_add_u32 s47, s45, s48")
        self.dma_phase(1)
        self.tail_srds()
        e(f"v_mov_b32 v21, {self.FL}")
        e("v_add_u32 v20, s49, v21")
        if self.o.get("oob", 1):
            e("v_cmp_eq_u32 vcc, 0, v0")
            e("v_mov_b32 v24, 0x40000")
            e("v_cndmask_b32 v20, v24, v20, vcc")
        e("v_mov_b32 v24, 0")
        e("v_lshlrev_b32 v22, 2, v0")
        e("v_mov_b32 v23, 1")
        e("s_mul_i32 s50, s2, 10")
        e("s_lshr_b32 s50, s50, 8")
        e("s_add_u32 s50, s50, 17")
        e("s_cmp_eq_u32 s49, 3")
        e("s_cselect_b32 s50, s50, 0")
        e("s_mov_b32 s51, 0x80808080")
        e("v_mov_b32 v25, 0x80")
        e("s_barrier")

        def cnt_after(p):
            q = self.allq
            idx = max([i for i, t in enumerate(q) if t <= p], default=-1)
            return len(q) - 1 - idx

        def publish(p):
            if p < 0:
                return
            e(f"s_waitcnt vmcnt({cnt_after(p)})")
            e(f"ds_write_b8 v20, v25 offset:{4*p}")

        def relchk(r, target):
            e("s_waitcnt lgkmcnt(0)")
            e("v_readfirstlane_b32 s52, v4")
            if r == 26:
                e("s_and_b32 s65, s52, 0x01010101")
                e("s_cbranch_scc1 L_safe_loader")
            e("s_cmp_eq_u32 s52, s51")
            e(f"s_cbranch_scc1 {target}")
        self.allq = [0] * 8 + [1] * 8
        publish(0)
        self.pub = 0
        for p in range(2, self.NPH):
            if p == 14:
                e("L_re_loader:")
                e(f"ds_read_b32 v4, v21 offset:{256+4*(p-4)}")
            if p >= 4:
                r = p - 4
                relchk(r, f"L_lg{p}")
                for pp in range(self.pub + 1, p - 1):
                    publish(pp)
                if not (13 <= p <= 28):
                    e(f"ds_read_b32 v4, v21 offset:{256+4*r}")
                    relchk(r, f"L_lg{p}")
                    publish(p - 1)
                e("s_mov_b32 s67, 0")
                e(f"L_lw{p}:")
                e(f"ds_read_b32 v4, v21 offset:{256+4*r}")
                e("s_add_u32 s67, s67, 1")
                relchk(r, f"L_lg{p}")
                if self.o.get("lsleep", 1):
                    e(f"s_sleep {self.o.get('lsleep', 1)}")
                e("s_cmp_lt_u32 s67, 0x100000")
                e(f"s_cbranch_scc1 L_lw{p}")
                e(f"L_lg{p}:")
            W = self.o.get("win", 10)
            us = [(upper, hsel) for upper in range(2) for hsel in range(2) if self.PH[p][upper] is not None]
            for i, (upper, hsel) in enumerate(us):
                e(f"s_waitcnt vmcnt({W})")
                while self.pub + 1 < p and cnt_after(self.pub + 1) >= W:
                    self.pub += 1
                    e(f"ds_write_b8 v20, v25 offset:{4*self.pub}")
                if i == len(us) - 1 and 4 <= p + 1 < self.NPH and p != 13:
                    e(f"ds_read_b32 v4, v21 offset:{256+4*(p-3)}")
                self.dma_half(p, upper, hsel)
                self.allq += [p, p]
            if p < self.o["d2"] + 1:
                publish(p - 1)
                self.pub = max(self.pub, p - 1)
            if p == 13:
                e("s_cmp_lg_u32 s49, 3")
                e("s_cbranch_scc1 L_noclear")
                e("s_lshl_b32 s65, s63, 8")
                e(f"buffer_store_dword v24, v22, s[{self.sIN}:{self.sIN+3}], s65 offen sc0 sc1")
                e("L_noclear:")
            if 17 <= p <= 26:
                e(f"s_cmp_lg_u32 s50, {p}")
                e(f"s_cbranch_scc1 L_noann{p}")
                e("s_lshl_b32 s65, s61, 4")
                e("s_add_u32 s65, s65, s63")
                e("s_mov_b64 exec, 1")
                e(f"buffer_store_byte v23, v24, s[{self.sDBG}:{self.sDBG+3}], s65 offen sc0 sc1")
                e("s_mov_b64 exec, -1")
                e(f"L_noann{p}:")
            if p == 29:
                for pp in range(self.pub + 1, p + 1):
                    publish(pp)
                self.pub = p
                e("s_cmp_lg_u32 s49, 3")
                e("s_cbranch_scc1 L_fm_clr_done")
                e("s_lshl_b32 s65, s61, 4")
                e("v_and_b32 v2, 3, v0")
                e("v_lshlrev_b32 v2, 2, v2")
                e("s_mov_b32 s67, 0")
                e("L_fm_clr:")
                e(f"buffer_load_dword v28, v2, s[{self.sDBG}:{self.sDBG+3}], s65 offen sc0 sc1")
                e("s_add_u32 s67, s67, 1")
                e("s_cmp_gt_u32 s67, 0x40000")
                e("s_cbranch_scc1 L_fm_clr_done")
                e("s_waitcnt vmcnt(0)")
                e("v_cmp_ne_u32 vcc, 0x01010101, v28")
                e("s_nop 4")
                e("s_cbranch_vccnz L_fm_clr")
                e("L_fm_clr_done:")
        for pp in range(self.pub + 1, self.NPH):
            publish(pp)
        e("s_cmp_eq_u32 s49, 3")
        e("s_cbranch_scc1 L_flagman")
        self.poll_flags("L_poll_l", "s49")
        e("s_xor_b32 s65, s49, s68")
        e("s_lshl_b32 s66, s65, 18")
        e("s_lshl_b32 s67, s63, 14")
        e("s_add_u32 s66, s66, s67")
        e("v_lshlrev_b32 v1, 4, v0")
        for i in range(16):
            if i % 4 == 0 and i:
                e("s_add_u32 s66, s66, 4096")
            e(f"buffer_load_dwordx4 {vr(32+4*i)}, v1, s[{self.sRD}:{self.sRD+3}], s66 offen offset:{(i%4)*1024} sc1")
        e("v_and_b32 v2, 15, v0")
        e("v_lshlrev_b32 v2, 10, v2")
        e("v_bfe_u32 v3, v0, 4, 1")
        e("v_lshl_add_u32 v2, v3, 5, v2")
        e("v_bfe_u32 v3, v0, 5, 1")
        e("v_lshl_add_u32 v2, v3, 4, v2")
        self.unit_offset("s65", "s67")
        e("s_mov_b32 s66, 0xffff0000")
        for i in range(16):
            e(f"s_waitcnt vmcnt({15-i})")
            for k in range(4):
                r = 32 + 4 * i + k
                if i == 0:
                    e(f"v_lshlrev_b32 v{8+2*k}, 16, v{r}")
                    e(f"v_and_b32 v{9+2*k}, s66, v{r}")
                else:
                    e(f"v_lshlrev_b32 v16, 16, v{r}")
                    e(f"v_and_b32 v17, s66, v{r}")
                    e(f"v_add_f32 v{8+2*k}, v{8+2*k}, v16")
                    e(f"v_add_f32 v{9+2*k}, v{9+2*k}, v17")
        for k in range(4):
            e(f"v_cvt_pk_bf16_f32 v{16+k}, v{8+2*k}, v{9+2*k}")
        e("v_permlane16_swap_b32 v16, v18")
        e("v_permlane16_swap_b32 v17, v19")
        e(f"buffer_store_dwordx4 v[16:19], v2, s[{self.sOUT}:{self.sOUT+3}], s67 offen")
        e("s_endpgm")
        e("L_flagman:")
        e("s_lshl_b32 s65, s63, 2")
        e("v_lshlrev_b32 v2, 8, v0")
        e("s_mov_b32 s66, 0")
        e("s_mov_b32 s67, 0")
        e("s_mov_b64 exec, 0xffff")
        e("L_fm_loop:")
        e("ds_read_b128 v[4:7], v21 offset:528")
        e("s_add_u32 s67, s67, 1")
        e("s_waitcnt lgkmcnt(0)")
        e("v_lshrrev_b32 v4, 2, v4")
        e("v_lshrrev_b32 v5, 2, v5")
        e("v_lshrrev_b32 v6, 2, v6")
        e("v_lshrrev_b32 v7, 2, v7")
        e("v_add3_u32 v4, v4, v5, v6")
        e("v_add_u32 v4, v4, v7")
        e("v_readfirstlane_b32 s52, v4")
        e("s_cmp_gt_u32 s67, 0x400000")
        e("s_cbranch_scc1 L_end")
        e("L_fm_pub:")
        e("s_cmp_le_u32 s52, s66")
        e("s_cbranch_scc1 L_fm_loop")
        e(f"buffer_store_dword v23, v2, s[{self.sIN}:{self.sIN+3}], s65 offen sc0 sc1")
        e("s_add_u32 s65, s65, 64")
        e("s_add_u32 s66, s66, 1")
        e("s_cmp_lt_u32 s66, 4")
        e("s_cbranch_scc1 L_fm_pub")
        e("s_endpgm")
        e("L_safe_loader:")
        e("s_waitcnt vmcnt(0)")
        e("s_barrier")
        e("s_mov_b32 s67, 0")
        e("L_safe_l_loop:")
        self.dma_half(10, 0, 0, base=0, so_reg="s67")
        self.dma_half(10, 0, 1, base=0, so_reg="s67")
        e("s_waitcnt vmcnt(0)")
        e("s_barrier")
        e("s_add_u32 s67, s67, 16384")
        e("s_barrier")
        e("s_cmp_lt_u32 s67, 262144")
        e("s_cbranch_scc1 L_safe_l_loop")
        for p in range(10, 14):
            self.dma_phase(p)
        e("s_waitcnt vmcnt(0)")
        for p in range(10, 14):
            e(f"ds_write_b8 v20, v25 offset:{4*p}")
        e("s_waitcnt lgkmcnt(0)")
        e("s_barrier")
        e("s_branch L_re_loader")

    def unit_offset(self, sblk, sdst):
        e = self.e
        e(f"s_lshl_b32 {sdst}, {sblk}, 8")
        e("s_bfe_u32 s52, s63, 0x10003")
        e("s_lshl_b32 s52, s52, 7")
        e(f"s_add_u32 {sdst}, {sdst}, s52")
        e("s_bfe_u32 s52, s63, 0x10001")
        e("s_lshl_b32 s52, s52, 6")
        e(f"s_add_u32 {sdst}, {sdst}, s52")
        e("s_bfe_u32 s52, s63, 0x10002")
        e("s_lshl_b32 s52, s52, 15")
        e(f"s_add_u32 {sdst}, {sdst}, s52")
        e("s_and_b32 s52, s63, 1")
        e("s_lshl_b32 s52, s52, 14")
        e(f"s_add_u32 {sdst}, {sdst}, s52")

    def spin_stub(self, name, off, extra=None):
        L = [f"L_sp{name}:", "s_mov_b32 s67, 0", f"L_sp{name}_l:",
             f"ds_read_b32 v{self.vF}, v{self.vFA} offset:{off}", "s_add_u32 s67, s67, 1",
             "s_waitcnt lgkmcnt(0)", f"v_readfirstlane_b32 s52, v{self.vF}"]
        if extra:
            L += ["s_and_b32 s66, s52, 0x01010101", f"s_cbranch_scc1 {extra}"]
        L += [f"s_cmp_eq_u32 s52, s{self.sALL}", f"s_cbranch_scc1 L_bk{name}",
              "s_cmp_lt_u32 s67, 0x100000", f"s_cbranch_scc1 L_sp{name}_l", f"s_branch L_bk{name}"]
        self.stubs += L

    def release(self, phi):
        self.e(f"ds_write_b8 v{self.vRA}, v{self.ONE} offset:{256+4*phi}")
        self.lg.push((99, "rel"))
        self.released.append(phi)

    def run_slots(self, slots):
        n = len(slots)
        DMAX, RPG, WG, FLD = self.o["DMAX"], self.o["RPG"], self.o["WG"], self.o["FLD"]
        first = {}
        last = {}
        for j, s in enumerate(slots):
            s.setdefault("gateid", s["phase"])
            first.setdefault(s["gateid"], j)
            last[s["phase"]] = j
            if s.get("phase26"):
                last[26] = j
        order = sorted(first, key=lambda p: first[p])
        rorder = sorted(last, key=lambda p: last[p])
        st = {p: 0 for p in order}
        at = {}
        nxt = 0
        rel_i = 0
        cur_g = -1

        def step_flags(g, force=False):
            for p in order:
                if st[p] == 3:
                    continue
                j = first[p]
                vf = self.vF
                off = 512 if p == "X" else 4 * p
                urgent = force or nxt == j and j - g <= 3
                if p == "X" and not self.x_written:
                    return
                if st[p] == 0 and (j - g <= DMAX + FLD or urgent):
                    self.e(f"ds_read_b32 v{vf}, v{self.vFA} offset:{off}")
                    self.lg.push((98, "fl", p))
                    st[p] = 1
                    at[p] = g
                    if not urgent:
                        return
                if st[p] == 1 and ((98, "fl", p) not in self.lg.q or g - at[p] >= FLD + 1 or urgent):
                    self.lg.need(lambda t: t == (98, "fl", p))
                    self.e(f"v_cmp_ne_u32 vcc, s{self.sALL}, v{vf}")
                    st[p] = 2
                    if not urgent:
                        return
                    self.e("s_nop 4")
                if st[p] == 2:
                    self.e(f"s_cbranch_vccnz L_sp{p}")
                    self.e(f"L_bk{p}:")
                    self.spin_stub(p, off, "L_safe_compute" if p == "X" else None)
                    st[p] = 3
                    self.stamp(f"B{p}", 1 if p in (0, 5, 10, 12, 19, 26, 28, 31) else 2)
                return

        def issue_reads(g, limit):
            nonlocal nxt
            k = 0
            while nxt < n and k < limit and nxt - g <= DMAX and st[slots[nxt]["gateid"]] == 3:
                for tag, text in slots[nxt]["reads"]:
                    self.e(text)
                    self.lg.push(tag)
                slots[nxt]["issued"] = g
                nxt += 1
                k += 1
        step_flags(-1, True)
        issue_reads(-1, 5)
        for g, s in enumerate(slots):
            assert nxt > g, (g, nxt)
            if "label" in s:
                s["label"](slots, g, nxt)
            for f in s.get("pre", []):
                self.emit_fill(f)
            tags = list(s["need"])
            if any(t in tags for t in self.lg.q):
                for k in range(1, WG):
                    if (g + k) % WG and g + k < n and g + k < nxt and slots[g + k]["issued"] <= g - 3:
                        tags += slots[g + k]["need"]
                    else:
                        break
                tags += [(98, "fl", p) for p in at if at[p] <= g - 3]
                self.lg.need(lambda t: t in tags)
            ms = s["mfma"]
            self.e(ms[0])
            for f in s["fa"]:
                self.emit_fill(f)
            self.e(ms[1])
            if not s.get("novcc"):
                step_flags(g)
            issue_reads(g, RPG if nxt - g < DMAX - 2 else 1)
            for f in s["fb"]:
                self.emit_fill(f)
            while rel_i < len(rorder):
                p = rorder[rel_i]
                if nxt > last[p]:
                    if p + 4 < self.NPH:
                        self.release(p)
                    rel_i += 1
                else:
                    break
            if len(ms) > 2:
                self.e(ms[2])

    def emit_fill(self, f):
        if callable(f):
            f()
        elif self.o.get("dbg_drop") and f.startswith(tuple(self.o["dbg_drop"].split("+"))):
            pass
        else:
            self.e(f)

    def fb(self):
        b = 4 * (self.fbi % self.NFB)
        self.fbi += 1
        return b

    def spread(self, slots, ops):
        k = 2 * len(slots)
        n = len(ops)
        for i in range(k):
            slots[i // 2]["fa" if i % 2 == 0 else "fb"] += ops[i * n // k:(i + 1) * n // k]

    def setup(self):
        e = self.e
        if self.o.get("cpf", 1):
            e("s_getpc_b64 s[98:99]")
            e("L_pc:")
            e(f"s_sub_u32 s98, s98, L_pc-{KN}")
            e("s_subb_u32 s99, s99, 0")
            e(f"v_lshl_add_u32 v1, s{self.sW}, 6, v0")
            e("v_lshlrev_b32 v1, 7, v1")
            e(f"v_mov_b32 v2, L_code_end-{KN}-4")
            for i in range(2):
                e(f"v_min_u32 v3, v1, v2")
                e(f"global_load_dword a{44+i}, v3, s[98:99]")
                e("v_add_u32 v1, 32768, v1")
            e("s_nop 0")
        if self.o["prio"]:
            e(f"s_setprio {self.o['prio']}")
        e("v_lshlrev_b32 v1, 4, v0")
        for i in range(4):
            e(f"v_mov_b32 v{4+i}, 0")
        e(f"v_add_u32 v1, {self.FL}, v1")
        e("ds_write_b128 v1, v[4:7]")
        e(f"s_and_b32 s50, s{self.sW}, 1")
        e(f"s_lshr_b32 s51, s{self.sW}, 1")
        e("v_and_b32 v3, 15, v0")
        e("v_lshrrev_b32 v4, 4, v0")
        e("v_xor_b32 v1, v4, v3")
        e("v_lshlrev_b32 v1, 4, v1")
        e("v_lshl_add_u32 v1, v3, 8, v1")
        e("s_lshl_b32 s65, s50, 13")
        e("s_lshl_b32 s66, s68, 6")
        e("s_or_b32 s65, s65, s66")
        e(f"v_xor_b32 v{self.vXA}, s65, v1")
        for s in range(1, 4):
            e(f"v_xor_b32 v{self.vXA+s}, {s*64}, v{self.vXA}")
        e("v_bfe_u32 v5, v0, 4, 1")
        e("v_lshrrev_b32 v6, 5, v0")
        e("v_lshl_or_b32 v1, v5, 1, v6")
        e("v_xor_b32 v1, v1, v3")
        e("v_lshlrev_b32 v1, 4, v1")
        e(f"v_lshl_add_u32 v{self.vKA}, v3, 8, v1")
        for s in range(1, 4):
            e(f"v_xor_b32 v{self.vKA+s}, {s*64}, v{self.vKA}")
        e("v_bfe_u32 v1, v0, 2, 2")
        e("v_and_b32 v2, 1, v0")
        e("v_bfe_u32 v3, v0, 1, 1")
        e("v_lshl_or_b32 v7, v5, 2, v1")
        e("v_lshl_or_b32 v7, v7, 1, v3")
        e("v_lshlrev_b32 v7, 4, v7")
        e("v_lshl_or_b32 v7, v2, 3, v7")
        e("v_lshl_add_u32 v6, v4, 3, v1")
        e("v_lshl_add_u32 v6, v6, 9, v7")
        e("s_lshl_b32 s65, s51, 8")
        e(f"v_add_u32 v{self.vWA}, s65, v6")
        for c in range(1, 8):
            e(f"v_xor_b32 v{self.vWA+c}, {c*32}, v{self.vWA}")
        for c in range(8):
            e(f"v_add_u32 v{self.vWA+8+c}, 65536, v{self.vWA+c}")
        e("v_lshl_add_u32 v6, v4, 2, v1")
        e("v_lshl_add_u32 v6, v6, 8, v7")
        e("s_and_b32 s65, s69, 1")
        e("s_lshl_b32 s65, s65, 7")
        e("s_or_b32 s65, s65, 65536")
        e(f"v_xor_b32 v{self.vT}, s65, v6")
        e("s_lshr_b32 s65, s69, 1")
        e("s_xor_b32 s65, s65, s51")
        e("s_lshl_b32 s65, s65, 16")
        e("s_lshl_b32 s66, s51, 7")
        e("s_or_b32 s65, s65, s66")
        e(f"v_xor_b32 v{self.vT+1}, s65, v6")
        e(f"s_lshl_b32 s65, s{self.sW}, 16")
        e(f"v_lshl_add_u32 v{self.vST}, v0, 4, s65")
        e(f"s_mul_i32 s65, s51, {self.EX ^ self.slot_addr(26, 0)}")
        e(f"s_xor_b32 s65, s65, {self.EX}")
        e(f"s_xor_b32 s66, s65, {self.EX ^ self.slot_addr(26, 0)}")
        e("s_lshl_b32 s67, s50, 13")
        e("s_add_u32 s65, s65, s67")
        e("s_add_u32 s66, s66, s67")
        e(f"v_lshl_add_u32 v{self.vEXW}, v0, 4, s65")
        e(f"v_lshl_add_u32 v{self.vEXR}, v0, 4, s66")
        e(f"v_mov_b32 v{self.vFA}, {self.FL}")
        e(f"v_add_u32 v{self.vRA}, s{self.sW}, v{self.vFA}")
        e("v_cmp_eq_u32 vcc, 0, v0")
        e("v_cndmask_b32 v4, 0, 1, vcc")
        if self.o.get("oob", 1):
            e("v_mov_b32 v1, 0x40000")
            e(f"v_cndmask_b32 v{self.vRA}, v1, v{self.vRA}, vcc")
            e(f"v_cndmask_b32 v7, v1, v{self.vFA}, vcc")
        else:
            e(f"v_mov_b32 v7, v{self.vFA}")
        e(f"s_mov_b32 s{self.sALL}, 0x80808080")
        e(f"s_mov_b32 s97, {f32(self.o['thresh'])}")
        for i in range(4):
            e(f"v_mov_b32 v{self.ONE+i}, 0x3f803f80")
        e(f"v_mov_b32 v{self.vMP}, 0xff800000")
        e(f"v_mov_b32 v{self.vMP+1}, 0xff800000")
        e(f"s_lshl_b32 s{self.sRS}, s68, 18")
        e("s_waitcnt lgkmcnt(0)")
        e("s_lshl_b32 s66, s61, 20")
        e("s_lshl_b32 s67, s63, 10")
        e("s_add_u32 s66, s66, s67")
        e(f"s_add_u32 s{self.sWS}, s18, s66")
        e(f"s_addc_u32 s{self.sWS+1}, s19, 0")
        e(f"s_mov_b32 s{self.sWS+2}, {(1 << 20) - 15*1024}")
        e(f"s_mov_b32 s{self.sWS+3}, 0x20000")
        self.tail_srds()

    def slot(self, phase, reads, mfma, need):
        return dict(phase=phase, reads=reads, mfma=mfma, need=need, fa=[], fb=[])

    def qproj_slots(self):
        slots = []
        xphase = {}
        XB = self.S[0]
        for phi in range(10):
            first = len(slots)
            xr = []
            for upper, item in enumerate(self.PH[phi]):
                kind, n = item[0], int(item[1:])
                base = self.slot_addr(phi, upper)
                if kind == "x":
                    for s in range(4):
                        for qq in range(2):
                            a = XB + (n % 2) * 32 + 8 * s + 4 * qq
                            xr.append(((phi, "x", n, s, qq),
                                       f"ds_read_b128 {vr(a)}, v{self.vXA+s} offset:{base+qq*4096}"))
                    xphase[n] = phi
                    continue
                for c in range(8):
                    fb = self.fb()
                    va = self.vWA + c + 8 * upper
                    o = base % 65536
                    tg = [(phi, "w", n, c, g) for g in range(2)]
                    reads = [(tg[g], f"ds_read_b64_tr_b16 {ar(fb+2*g, 2)}, v{va} offset:{o+g*4*512}") for g in range(2)]
                    ch, s = n // 4, n % 4
                    ms = []
                    for qq in range(2):
                        d = self.O + 8 * c + 4 * qq
                        a = XB + (ch % 2) * 32 + 8 * s + 4 * qq
                        ms.append(f"{MF} {vr(d)}, {ar(fb)}, {vr(a)}, {'0' if n == 0 else vr(d)}")
                    slots.append(self.slot(phi, reads, ms, tg + [(xphase[ch], "x", ch, s, qq) for qq in range(2)]))
            if xr:
                if phi == 0:
                    slots[first]["reads"] = xr[:2] + slots[first]["reads"]
                    xr = xr[2:]
                    first += 2
                for i, r in enumerate(xr):
                    slots[first + i]["reads"].insert(0, r)
        return slots

    def q_convert(self, ks):
        ops = []
        for qq in range(2):
            q = self.Q + 16 * qq + 4 * ks
            for T in range(2):
                d = self.O + 8 * (2 * ks + T) + 4 * qq
                for i in range(4):
                    ops.append(f"v_mul_f32 v{d+i}, s79, v{d+i}")
                ops.append(f"v_cvt_pk_bf16_f32 v{q+2*T}, v{d}, v{d+1}")
                ops.append(f"v_cvt_pk_bf16_f32 v{q+2*T+1}, v{d+2}, v{d+3}")
        for qq in range(2):
            q = self.Q + 16 * qq + 4 * ks
            ops.append(f"v_permlane16_swap_b32 v{q}, v{q+2}")
            ops.append(f"v_permlane16_swap_b32 v{q+1}, v{q+3}")
        return ops

    def k_slot(self, tau, kt, ks, first_c, base=None):
        phi = 10 + tau // 2
        fb = self.fb()
        tag = (phi, "k", tau, kt, ks)
        o = (self.slot_addr(phi, 0) if base is None else base) + (tau % 2) * 8192 + kt * 4096
        reads = [(tag, f"ds_read_b128 {ar(fb)}, v{self.vKA+ks} offset:{o}")]
        ms = []
        for qq in range(2):
            d = self.S[tau % 2] + 8 * qq + 4 * kt
            C = vr(d) if ks else ("0" if first_c else vr(self.C + 4 * qq))
            ms.append(f"{MF} {vr(d)}, {ar(fb)}, {vr(self.Q+16*qq+4*ks)}, {C}")
        return self.slot(phi, reads, ms, [tag])

    def v_slot(self, tau, dt):
        phi = 11 + tau // 2
        fb = self.fb()
        o = self.slot_addr(phi, 1) % 65536 + (tau % 2) * 8192
        tg = [(phi, "v", tau, dt, g) for g in range(2)]
        reads = [(tg[g], f"ds_read_b64_tr_b16 {ar(fb+2*g, 2)}, v{self.vVA+dt} offset:{o+g*4096}") for g in range(2)]
        ms = []
        for qq in range(2):
            d = self.O + 8 * dt + 4 * qq
            ms.append(f"{MF} {vr(d)}, {ar(fb)}, {vr(self.P[tau % 2]+4*qq)}, {'0' if tau == 0 else vr(d)}")
        return self.slot(phi, reads, ms, tg)

    def sum_mfma(self, tau, qq):
        d = self.LS + 4 * qq
        return f"{MF} {vr(d)}, {vr(self.ONE)}, {vr(self.P[tau % 2]+4*qq)}, {'0' if tau == 0 else vr(d)}"

    def sm_place(self, it, t, sub=False):
        r = self.S[t % 2]
        pw = self.P[t % 2]
        per = 16 // len(it)
        for j in range(16):
            s = it[j // per]
            where = "fa" if j % per == 0 else "fb"
            if sub:
                ps = it[(j - 1) // per] if j else it[0]
                pw_ = ("fa" if (j - 1) % per == 0 and per > 1 else "fb") if j else "fa"
                ps[pw_].append(f"v_sub_f32 v{r+j}, v{r+j}, v{self.vM+j//8}")
            s[where].append(f"v_exp_f32 v{r+j}, v{r+j}")
            if per == 1 and self.o.get("cvtlate", 1):
                if j >= 8:
                    k = j - 8
                    s["fb"].append(f"v_cvt_pk_bf16_f32 v{pw+k}, v{r+2*k}, v{r+2*k+1}")
            elif j >= 2 and j % 2 == 0:
                s["fb"].append(f"v_cvt_pk_bf16_f32 v{pw+j//2-1}, v{r+j-2}, v{r+j-1}")
        if not (per == 1 and self.o.get("cvtlate", 1)):
            it[-1]["fb"].append(f"v_cvt_pk_bf16_f32 v{pw+7}, v{r+14}, v{r+15}")

    def max_ops(self, regs, m, init=None):
        ops = []
        regs = list(regs)
        cur = init
        if cur is None:
            ops.append(f"v_max_f32 v{m}, v{regs[0]}, v{regs[1]}")
            regs = regs[2:]
            cur = m
        while regs:
            if len(regs) >= 2:
                ops.append(f"v_max3_f32 v{m}, v{cur}, v{regs[0]}, v{regs[1]}")
                regs = regs[2:]
            else:
                ops.append(f"v_max_f32 v{m}, v{cur}, v{regs[0]}")
                regs = regs[1:]
            cur = m
        return ops

    def xlane_max(self, m, tmp):
        return [f"v_mov_b32 v{tmp}, v{m}", f"v_permlane32_swap_b32 v{tmp}, v{m}", f"v_max_f32 v{m}, v{m}, v{tmp}",
                f"v_mov_b32 v{tmp}, v{m}", f"v_permlane16_swap_b32 v{tmp}, v{m}", f"v_max_f32 v{m}, v{m}, v{tmp}"]

    def attention_slots(self):
        slots = [self.k_slot(0, kt, ks, True) for ks in range(4) for kt in range(2)]
        s1 = [self.k_slot(1, kt, ks, True) for kt in range(2) for ks in range(4)]
        a, b = [], []
        for qq, lst in ((0, a), (1, b)):
            r = self.S[0] + 8 * qq
            lst += self.max_ops(range(r, r + 8), self.vM + qq, self.vMP + qq)
            lst += self.xlane_max(self.vM + qq, 1 + qq)
            lst += [f"v_sub_f32 v{self.C+4*qq+i}, 0, v{self.vM+qq}" for i in range(4)]
        ops = [x for p in zip(a, b) for x in p]
        self.spread(s1[1:4], ops)
        self.sm_place(s1[4:], 0, True)
        slots += s1
        for t in range(1, 31):
            it = [self.k_slot(t + 1, kt, ks, False) for kt in range(2) for ks in range(4)]
            it += [self.v_slot(t - 1, dt) for dt in range(8)]
            if t == 1:
                self.sm_place(it[4:12], t, True)
            else:
                self.sm_place(it, t)
            sp = self.o.get("sumpos", (3, 7))
            for qq in range(2):
                it[sp[qq]]["mfma"].append(self.sum_mfma(t - 1, qq))
            slots += it
        it = [self.v_slot(30, dt) for dt in range(8)]
        self.sm_place(it, 31)
        for qq in range(2):
            it[qq]["mfma"].append(self.sum_mfma(30, qq))
        slots += it
        it = [self.v_slot(31, dt) for dt in range(8)]
        for qq in range(2):
            it[qq]["mfma"].append(self.sum_mfma(31, qq))
        slots += it
        return slots

    def o_convert(self, f):
        ops = []
        for qq in range(2):
            pk = self.S[0] + 8 * f + 4 * qq
            for T in range(2):
                r = self.O + 8 * (2 * f + T) + 4 * qq
                for i in range(4):
                    ops.append(f"v_mul_f32 v{r+i}, v{1+qq}, v{r+i}")
                ops.append(f"v_cvt_pk_bf16_f32 v{pk+2*T}, v{r}, v{r+1}")
                ops.append(f"v_cvt_pk_bf16_f32 v{pk+2*T+1}, v{r+2}, v{r+3}")

            def wr(pk=pk, qq=qq):
                self.e(f"ds_write_b128 v{self.vEXW}, {vr(pk)} offset:{(2*f+qq)*1024}")
                self.lg.push((97, "ow"))
            ops.append(wr)
        return ops

    def oacc(self, blk):
        return self.C if blk % 2 == 0 else self.O

    def outproj_slots(self):
        slots = []
        for blk in range(4):
            parts = [(0, 0), (0, 1), (1, 0), (1, 1)]
            if blk == 0:
                parts = [(0, 0), (1, 0), (0, 1), (1, 1)]
            for a, oth in parts:
                phi = 27 + 2 * blk + a
                for k in range(2):
                    f = 2 * a + k
                    for c in range(4):
                        fb = self.fb()
                        o = self.slot_addr(phi, 0) + k * 8192
                        tg = [(phi, "o", oth, k, c, g) for g in range(2)]
                        reads = [(tg[g], f"ds_read_b64_tr_b16 {ar(fb+2*g, 2)}, v{self.vOA+4*oth+c} offset:{o+g*4096}")
                                 for g in range(2)]
                        need = list(tg)
                        ms = []
                        for qq in range(2):
                            if oth:
                                bq = self.Q + 8 * f + 4 * qq
                                need.append((26, "of", f, qq))
                            else:
                                bq = self.S[0] + 8 * f + 4 * qq
                            d = self.oacc(blk) + 16 * qq + 4 * c
                            C = "0" if (a == 0 and oth == 0 and k == 0) else vr(d)
                            ms.append(f"{MF} {vr(d)}, {ar(fb)}, {vr(bq)}, {C}")
                        sl = self.slot(phi, reads, ms, need)
                        if blk == 0 and oth:
                            sl["gateid"] = "X"
                            if a == 0:
                                i = 4 * k + c
                                ff, qq = i // 2, i % 2
                                if i == 0:
                                    sl["reads"] = [((26, "of", 0, 1), f"ds_read_b128 {vr(self.Q+4)}, v{self.vEXR} offset:1024")] + sl["reads"]
                                if i != 1:
                                    sl["reads"] = [((26, "of", ff, qq), f"ds_read_b128 {vr(self.Q+8*ff+4*qq)}, "
                                                    f"v{self.vEXR} offset:{(2*ff+qq)*1024}")] + sl["reads"]
                        slots.append(sl)
        return slots

    def store_ops(self, blk):
        ops = [f"s_xor_b32 s{self.sT}, s{self.sRS}, {blk << 18}"]
        for k in range(2):
            for qq in range(2):
                d = self.oacc(blk) + 16 * qq + 8 * k
                pk = self.O + 32 + (blk % 2) * 16 + 8 * k + 4 * qq
                for i in range(4):
                    ops.append(f"v_cvt_pk_bf16_f32 v{pk+i}, v{d+2*i}, v{d+2*i+1}")
                if k or qq:
                    ops.append(f"s_add_u32 s{self.sT}, s{self.sT}, 16384")

                def st(pk=pk):
                    self.e(f"buffer_store_dwordx4 {vr(pk)}, v{self.vST}, s[{self.sWS}:{self.sWS+3}], s{self.sT} offen sc1")
                    self.vm.push(blk)
                ops.append(st)
        return ops

    def ack_ops(self, blk):
        def f():
            self.vm.need(lambda t: t <= blk)
            self.e(f"ds_add_u32 v7, v4 offset:{528+4*blk}")
            self.lg.push((99, "ack"))
        return [f]

    def compute(self):
        e = self.e
        self.fbi = 0
        self.setup()
        if self.stamps:
            e(f"v_mov_b32 v{self.vS1}, 0")
            e(f"v_mov_b32 v{self.vS2}, 0")
            e(f"v_writelane_b32 v{self.vS1}, s70, 0")
        self.stamp("setup")
        sc = math.log2(math.e) / math.sqrt(128.0)
        e(f"s_mov_b32 s79, {f32(sc)}")
        qs = self.qproj_slots()
        at = self.attention_slots()
        os_ = self.outproj_slots()
        self.spread(qs[-4:-2], self.q_convert(0))
        self.spread(qs[-2:], self.q_convert(1))
        self.spread(at[0:2], self.q_convert(2))
        self.spread(at[2:4], self.q_convert(3))
        adr = [f"v_xor_b32 v{self.vVA+d}, {d*32}, v{self.vT}" for d in range(8)]
        adr += [f"v_xor_b32 v{self.vOA+4*o+c}, {o*65536+c*32}, v{self.vT+1}" for o in range(2) for c in range(4)]
        self.spread(at[4:8], adr)

        def re_label(slots, g, nxt):
            self.re_reads = [r for s in slots[g:nxt] for r in s["reads"]]
            assert all(10 <= s["phase"] <= 13 for s in slots[g:nxt])
            self.re_rel = [p for p in self.released if p >= 10]
            e("L_re_compute:")
        at[8]["label"] = re_label
        L0, L1 = self.LS, self.LS + 4
        at[-5]["fa"] += [f"v_rcp_f32 v1, v{L0}"]
        at[-5]["fb"] += [f"v_rcp_f32 v2, v{L1}", f"v_add_f32 v3, v{L0}, v{L1}",
                         "v_cmp_nlt_f32 s[98:99], v3, s97"]
        at[-4]["fa"] += ["s_cmp_lg_u64 s[98:99], 0", f"s_cselect_b32 s52, s{self.sMODE}, 0", "s_cmp_lg_u32 s52, 0",
                         "s_cselect_b32 s52, 1, 0x80", "v_mov_b32 v3, s52"]
        self.spread(at[-4:], self.o_convert(0) + self.o_convert(1)[:13])
        self.spread(os_[0:3], self.o_convert(1)[13:] + self.o_convert(2)[:13])
        self.spread(os_[3:8], self.o_convert(2)[13:] + self.o_convert(3))

        def xw():
            e(f"ds_write_b8 v{self.vRA}, v3 offset:512")
            self.lg.push((97, "xw"))
            self.x_written = True
        os_[7]["fb"].append(xw)
        os_[23]["phase26"] = True
        AD = self.o["ackdist"]
        for blk in range(3):
            self.spread(os_[32 * (blk + 1) + 2:32 * (blk + 1) + 8], self.store_ops(blk))
            j = 32 * (blk + 1) + 8 + AD
            if j < len(os_):
                os_[j]["fb"] += self.ack_ops(blk)
        at[-1]["fb"].append(lambda: self.stamp("attn", 1))
        e("s_waitcnt lgkmcnt(0)")
        e("s_barrier")
        e("s_waitcnt vmcnt(0)")
        self.run_slots(qs + at + os_)
        for op in self.store_ops(3):
            self.emit_fill(op)
        self.stamp("outproj", 1)
        for blk in range(4):
            if 32 * (blk + 1) + 8 + AD >= len(os_):
                for op in self.ack_ops(blk):
                    self.emit_fill(op)
        self.stamp("acked", 1)
        self.poll_flags("L_poll_c", "3")
        self.stamp("polled", 1)
        e("s_xor_b32 s65, s68, 3")
        e("s_lshl_b32 s66, s65, 18")
        e("s_lshl_b32 s67, s63, 14")
        e("s_add_u32 s66, s66, s67")
        e(f"s_lshl_b32 s67, s{self.sW}, 8")
        e("s_add_u32 s66, s66, s67")
        e("v_lshlrev_b32 v1, 2, v0")
        for i in range(16):
            if i % 4 == 0 and i:
                e("s_add_u32 s66, s66, 4096")
            e(f"buffer_load_dword v{48+i}, v1, s[{self.sRD}:{self.sRD+3}], s66 offen offset:{(i%4)*1024} sc1")
        e("v_lshrrev_b32 v2, 2, v0")
        e("v_lshlrev_b32 v2, 10, v2")
        e("v_bfe_u32 v3, v0, 1, 1")
        e("v_lshl_add_u32 v2, v3, 5, v2")
        e("v_and_b32 v3, 1, v0")
        e("v_lshl_add_u32 v2, v3, 2, v2")
        self.unit_offset("s65", "s67")
        e(f"s_lshl_b32 s52, s{self.sW}, 3")
        e("s_add_u32 s67, s67, s52")
        e("s_mov_b32 s66, 0xffff0000")
        for i in range(16):
            e(f"s_waitcnt vmcnt({15-i})")
            if i == 0:
                e("v_lshlrev_b32 v4, 16, v48")
                e("v_and_b32 v5, s66, v48")
            else:
                e(f"v_lshlrev_b32 v6, 16, v{48+i}")
                e(f"v_and_b32 v7, s66, v{48+i}")
                e("v_add_f32 v4, v4, v6")
                e("v_add_f32 v5, v5, v7")
        e("v_cvt_pk_bf16_f32 v4, v4, v5")
        e(f"buffer_store_dword v4, v2, s[{self.sOUT}:{self.sOUT+3}], s67 offen")
        self.stamp("reduced", 1)
        if self.stamps:
            e("s_waitcnt vmcnt(0)")
            self.stamp("drain", 1)
            e("s_add_u32 s44, s18, 0x2000000")
            e("s_addc_u32 s45, s19, 0")
            e("s_mov_b32 s46, 0x4000000")
            e("s_mov_b32 s47, 0x20000")
            e("s_mul_i32 s65, s2, 4")
            e(f"s_add_u32 s65, s65, s{self.sW}")
            e("s_mul_i32 s65, s65, 512")
            e("v_lshlrev_b32 v1, 2, v0")
            e("s_getreg_b32 s66, hwreg(HW_REG_XCC_ID)")
            e(f"v_writelane_b32 v{self.vS1}, s66, 63")
            e(f"buffer_store_dword v{self.vS1}, v1, s[44:47], s65 offen")
            e(f"buffer_store_dword v{self.vS2}, v1, s[44:47], s65 offen offset:256")
        e("L_end:")
        e("s_endpgm")
        for ln in self.stubs:
            e(ln)
        e("L_safe_compute:")
        e("v_mov_b32 v3, 1")
        e(f"ds_write_b8 v{self.vRA}, v3 offset:{256+4*26}")
        e("s_waitcnt lgkmcnt(0)")
        e("s_barrier")
        e(f"s_mov_b32 s{self.sMODE}, 0")
        e("v_lshlrev_b32 v1, 4, v0")
        e(f"v_add_u32 v1, {self.FL}, v1")
        for i in range(4):
            e(f"v_mov_b32 v{self.C+i}, 0")
        e(f"ds_write_b128 v1, {vr(self.C)}")
        e("s_mov_b32 s67, 0")
        e("L_safe_c_loop:")
        e("s_barrier")
        self.fbi = 0
        for tau in range(2):
            ks_ = [self.k_slot(tau, kt, ks, True, base=0) for kt in range(2) for ks in range(4)]
            for s in ks_:
                e(s["reads"][0][1])
            e("s_waitcnt lgkmcnt(0)")
            for s in ks_:
                e(s["mfma"][0])
                e(s["mfma"][1])
            e("s_nop 7")
            self.fbi = 0
        e("s_barrier")
        for qq in range(2):
            regs = [self.S[tau] + 8 * qq + i for tau in range(2) for i in range(8)]
            for op in self.max_ops(regs, self.vMP + qq, self.vMP + qq):
                e(op)
        e("s_add_u32 s67, s67, 1")
        e("s_cmp_lt_u32 s67, 16")
        e("s_cbranch_scc1 L_safe_c_loop")
        e("s_barrier")
        ks_ = [self.k_slot(0, kt, ks, True) for kt in range(2) for ks in range(4)]
        for s in ks_:
            e(s["reads"][0][1])
        e("s_waitcnt lgkmcnt(0)")
        for s in ks_:
            e(s["mfma"][0])
            e(s["mfma"][1])
        e("s_nop 7")
        for tag, text in self.re_reads:
            e(text)
        for p in self.re_rel:
            e(f"ds_write_b8 v{self.vRA}, v{self.ONE} offset:{256+4*p}")
        e(f"v_mov_b32 v{self.vF}, 0")
        e("s_mov_b64 vcc, -1")
        e("s_waitcnt lgkmcnt(0)")
        e("s_branch L_re_compute")

    def main_kernel(self):
        self.stubs = []
        self.released = []
        self.x_written = False
        self.prologue()
        self.compute()
        self.loader()
        self.e("L_code_end:")
        return hazard_pass(self.L)


def kd(name, vgpr, accum, sgpr=102):
    return f""".amdhsa_kernel {name}
  .amdhsa_next_free_vgpr {vgpr}
  .amdhsa_next_free_sgpr {sgpr}
  .amdhsa_accum_offset {accum}
  .amdhsa_group_segment_fixed_size 0
  .amdhsa_kernarg_size 64
  .amdhsa_user_sgpr_count 2
  .amdhsa_user_sgpr_kernarg_segment_ptr 1
  .amdhsa_system_sgpr_workgroup_id_x 1
.end_amdhsa_kernel
"""


def build(stamps=0, opts=None):
    g = Gen(stamps, opts)
    body, added = g.main_kernel()
    txt = HEADER
    txt += "; @launch grid=(256,1,1) block=(512,1,1) lds=163840\n"
    txt += '.amdgcn_target "amdgcn-amd-amdhsa--gfx950"\n.text\n'
    txt += f".globl {KN}\n.p2align 8\n.type {KN},@function\n{KN}:\n" + "\n".join(body) + "\n"
    txt += '.section .rodata,"a"\n.p2align 6\n' + kd(KN, 256, g.ACC)
    txt += "; stamps: " + " ".join(g.stamp_names) + "\n"
    return txt, added


if __name__ == "__main__":
    import argparse
    ap = argparse.ArgumentParser()
    ap.add_argument("out")
    ap.add_argument("--stamps", type=int, default=0)
    ap.add_argument("--opt", action="append", default=[])
    a = ap.parse_args()
    opts = {}
    for o in a.opt:
        k, v = o.split("=")
        try:
            opts[k] = int(v)
        except ValueError:
            try:
                opts[k] = float(v)
            except ValueError:
                opts[k] = v
    txt, added = build(a.stamps, opts)
    open(a.out, "w").write(txt)
    print("wrote", a.out, "lines", txt.count("\n"), "nop states added", added)
```

```python
import math
import struct
from asmlib import hazard_pass, Queue

KN = "standalone__gqa_block_cached__near_ridge_kernel"
HEADER = """; Kernarg layout for this problem (64 bytes, ptrs only, base s[0:1]):
"""


def f32(x):
    return "0x%08x" % struct.unpack("<I", struct.pack("<f", x))[0]


MF = "v_mfma_f32_16x16x32_bf16"


def vr(a, n=4):
    return f"v[{a}:{a+n-1}]"


def ar(a, n=4):
    return f"a[{a}:{a+n-1}]"


class Gen:
    def __init__(self, stamps=0, opts=None):
        self.stamps = stamps
        self.o = dict(DMAX=10, BOFF=6, RPG=2, WG=4, kv_flags="nt", w_flags="nt", o_flags="", x_flags="", lead=0, prio=1, d2=3,
                      thresh=2.0 ** 60, ackdist=60)
        self.o.update(opts or {})
        self.L = []
        self.lg = Queue("lgkmcnt", 15, self.e)
        self.vm = Queue("vmcnt", 63, self.e)
        self.nstamp = 0
        self.stamp_names = ["start"]
        self.vKA, self.vXA = 8, 12
        self.vWA = 16
        self.vVA, self.vOA = 16, 24
        self.vST, self.vEXW, self.vEXR, self.vFL = 32, 33, 34, 35
        self.vM, self.vMP = 36, 38
        self.vS1, self.vS2 = 40, 41
        self.vT = 42
        self.ONE = 44
        b = 48
        self.S = [b, b + 16]
        self.C = b + 32
        self.P = [b + 40, b + 48]
        self.LS = b + 56
        self.O = b + 64
        self.Q = b + 128
        self.ACC = b + 160
        self.NFB = 12
        self.sX, self.sWQ, self.sK, self.sV, self.sWO, self.sWS = 20, 24, 28, 32, 36, 40
        self.sDBG, self.sOUT, self.sRD, self.sIN = 80, 84, 88, 92
        self.sW = 3
        self.sT = 53
        self.sRW, self.sRX, self.sRO, self.sRS = 56, 57, 58, 59
        self.sMODE = 78
        self.EX = 131072
        self.PH = self.phases()
        self.NPH = len(self.PH)

    def e(self, s):
        self.L.append(s if s.startswith("    ") or s.endswith(":") else "    " + s)

    def slot_addr(self, phi, upper):
        return (65536 if upper else 0) + (phi % 4) * 16384

    def stamp(self, name="", level=1):
        if not self.stamps or level > self.stamps:
            return
        i = self.nstamp
        self.nstamp += 1
        assert i < 61
        self.stamp_names.append(name)
        self.lg.drain()
        self.e("s_memrealtime s[72:73]")
        self.e("s_memtime s[74:75]")
        self.e("s_waitcnt lgkmcnt(0)")
        self.e(f"v_writelane_b32 v{self.vS1}, s72, {i+1}")
        self.e(f"v_writelane_b32 v{self.vS2}, s74, {i+1}")

    def phases(self):
        ph = [("x0", "w0"), ("x1", "w1"), ("w2", "w3"), ("w4", "w5"), ("x2", "w6"), ("w7", "w8"),
              ("w9", "w10"), ("x3", "w11"), ("w12", "w13"), ("w14", "w15"), ("K0", None)]
        for j in range(1, 16):
            ph.append((f"K{j}", f"V{j-1}"))
        ph.append((None, "V15"))
        for blk in range(4):
            for a in range(2):
                ph.append((f"o{4*blk+a}", f"o{4*blk+a+2}"))
        return ph

    def prologue(self):
        e = self.e
        e("s_cmp_ge_u32 s2, 256")
        e("s_cbranch_scc1 L_end")
        if self.stamps:
            e("s_memrealtime s[70:71]")
        e("s_load_dwordx16 s[4:19], s[0:1], 0")
        e("v_lshrrev_b32 v1, 6, v0")
        e("v_and_b32 v0, 63, v0")
        e(f"v_readfirstlane_b32 s{self.sW}, v1")
        e("s_and_b32 s60, s2, 7")
        e("s_lshr_b32 s61, s2, 4")
        e("s_bfe_u32 s62, s2, 0x10003")
        e("s_lshl_b32 s63, s60, 1")
        e("s_add_u32 s63, s63, s62")
        e("s_lshl_b32 s64, s61, 3")
        e("s_add_u32 s64, s64, s60")
        e("s_and_b32 s68, s61, 3")
        e("s_lshr_b32 s69, s61, 2")
        e("s_and_b32 s76, s60, 3")
        e("s_lshl_b32 s77, s62, 1")
        e("s_xor_b32 s76, s76, s77")
        e("s_xor_b32 s77, s76, s69")
        e("s_lshl_b32 s76, s76, 2")
        e("s_xor_b32 s76, s76, s61")
        e(f"s_mov_b32 s{self.sMODE}, {0 if self.o.get('dbg_nodma') else 1}")
        e(f"s_cmp_ge_u32 s{self.sW}, 4")
        e("s_cbranch_scc1 L_loader")

    def srd(self, s, lo, off_s, shift, nrec):
        e = self.e
        if off_s is None:
            e(f"s_mov_b32 s{s}, s{lo}")
            e(f"s_mov_b32 s{s+1}, s{lo+1}")
        else:
            e(f"s_lshl_b32 s66, s{off_s}, {shift}")
            e(f"s_add_u32 s{s}, s{lo}, s66")
            e(f"s_addc_u32 s{s+1}, s{lo+1}, 0")
        e(f"s_mov_b32 s{s+2}, {nrec}")
        e(f"s_mov_b32 s{s+3}, 0x20000")

    def tail_srds(self):
        self.srd(self.sDBG, 16, None, 0, 256)
        self.srd(self.sRD, 18, 61, 20, 1 << 20)
        self.srd(self.sOUT, 14, 61, 16, 65536)
        e = self.e
        e("s_lshl_b32 s66, s61, 12")
        e("s_add_u32 s66, s66, 0x1000000")
        e(f"s_add_u32 s{self.sIN}, s18, s66")
        e(f"s_addc_u32 s{self.sIN+1}, s19, 0")
        e(f"s_mov_b32 s{self.sIN+2}, 4096")
        e(f"s_mov_b32 s{self.sIN+3}, 0x20000")

    def dma_half(self, phi, upper, hsel, base=None, so_reg=None):
        item = self.PH[phi][upper]
        if item is None:
            return
        if self.o.get("dbg_nodma") and 16 <= phi <= 26:
            return
        e = self.e
        kind, n = item[0], int(item[1:])
        if base is None:
            base = self.slot_addr(phi, upper)
        if kind == "x":
            srd, vo, so, rs, hs, fl = self.sX, [8, 9], n * 256, self.sRX, 32768, "x_flags"
        elif kind == "w":
            srd, vo, so, rs, hs, fl = self.sWQ, [10, 11], n * 32 * 8192, self.sRW, 16 * 8192, "w_flags"
        elif kind == "K":
            srd, vo, so, rs, hs, fl = self.sK, [12, 13], n * 16384, None, 8192, "kv_flags"
        elif kind == "V":
            srd, vo, so, rs, hs, fl = self.sV, [14, 15], n * 16384, None, 8192, "kv_flags"
        else:
            srd, vo, so, rs, hs, fl = self.sWO, [16, 17], (n % 4) * 65536 + (n // 4) * 256, self.sRO, 32768, "o_flags"
        fl = self.o[fl].replace("+", " ")
        st = self.sT
        if rs is None:
            e(f"s_add_u32 m0, s{46+hsel}, {base}")
            e(f"s_add_u32 s{st}, s{44+hsel}, {so if so_reg is None else so_reg}")
        else:
            e(f"s_add_u32 m0, s48, {base+hsel*8192}")
            e(f"s_xor_b32 s{st}, s{rs}, {so+hsel*hs}")
        e(f"buffer_load_dwordx4 v{vo[0]}, s[{srd}:{srd+3}], s{st} offen {fl} lds")
        e(f"buffer_load_dwordx4 v{vo[1]}, s[{srd}:{srd+3}], s{st} offen offset:1024 {fl} lds")
        self.vm.push(phi)
        self.vm.push(phi)

    def is_kv(self, phi):
        return 10 <= phi <= 26

    def dma_phase(self, phi, which=(0, 1)):
        if phi >= self.NPH:
            return
        for upper in range(2):
            for hsel in which:
                self.dma_half(phi, upper, hsel)

    def poll_flags(self, lab, row):
        e = self.e
        e("s_lshl_b32 s65, s63, 8")
        e(f"s_lshl_b32 s66, {row}, 6")
        e("s_add_u32 s65, s65, s66")
        e("v_and_b32 v2, 15, v0")
        e("v_lshlrev_b32 v2, 2, v2")
        e("s_mov_b32 s67, 0")
        e(f"{lab}:")
        e(f"buffer_load_dword v4, v2, s[{self.sIN}:{self.sIN+3}], s65 offen sc0 sc1")
        e("s_add_u32 s67, s67, 1")
        e("s_cmp_gt_u32 s67, 0x40000")
        e(f"s_cbranch_scc1 {lab}_done")
        e("s_waitcnt vmcnt(0)")
        e("v_cmp_eq_u32 vcc, 0, v4")
        e("s_nop 4")
        e(f"s_cbranch_vccnz {lab}")
        e(f"{lab}_done:")
        e("s_waitcnt vmcnt(0)")

    def loader(self):
        e = self.e
        self.vm.q = []
        e("L_loader:")
        e(f"s_sub_u32 s49, s{self.sW}, 4")
        e("s_lshl_b32 s48, s49, 11")
        e(f"s_lshl_b32 s{self.sRW}, s76, 18")
        e(f"s_lshl_b32 s{self.sRX}, s77, 8")
        e("v_lshrrev_b32 v2, 4, v0")
        e("v_and_b32 v3, 15, v0")
        e("v_lshrrev_b32 v4, 5, v0")
        e("v_and_b32 v5, 31, v0")
        e("s_and_b32 s65, s49, 1")
        e("s_lshl_b32 s65, s65, 3")
        e("v_or_b32 v6, s65, v2")
        e("v_xor_b32 v6, v6, v3")
        e("v_lshlrev_b32 v6, 4, v6")
        e("s_lshl_b32 s65, s49, 3")
        e("v_add_u32 v7, s65, v2")
        e("v_lshl_add_u32 v8, v7, 10, v6")
        e("v_xor_b32 v9, 64, v8")
        e("v_add_u32 v9, 3072, v9")
        e("s_lshl_b32 s65, s49, 2")
        e("v_add_u32 v18, s65, v4")
        e("s_lshr_b32 s65, s49, 1")
        e("s_lshl_b32 s65, s65, 3")
        e("v_lshl_or_b32 v19, v4, 1, s65")
        e("v_xor_b32 v19, v19, v5")
        e("v_lshlrev_b32 v19, 4, v19")
        e("v_lshl_add_u32 v10, v18, 13, v19")
        e("v_xor_b32 v11, 64, v10")
        e(f"v_add_u32 v11, {16384-1024}, v11")
        e("s_waitcnt lgkmcnt(0)")
        self.srd(self.sX, 4, 61, 16, 65536)
        self.srd(self.sWQ, 10, 63, 9, 511 * 8192 + 512)
        self.dma_phase(0)
        self.srd(self.sK, 6, 64, 18, 262144)
        self.srd(self.sV, 8, 64, 18, 262144)
        self.srd(self.sWO, 12, 63, 18, 262144)
        e("v_lshl_add_u32 v12, v7, 8, v6")
        e("v_xor_b32 v13, 64, v12")
        e("v_lshlrev_b32 v18, 1, v2")
        e("v_xor_b32 v18, v18, v3")
        e("v_lshlrev_b32 v18, 4, v18")
        e("v_lshl_add_u32 v14, v7, 8, v18")
        e("v_xor_b32 v15, 128, v14")
        e("v_lshl_add_u32 v16, v7, 10, v18")
        e("v_xor_b32 v17, 128, v16")
        e("v_add_u32 v17, 3072, v17")
        e("s_lshl_b32 s65, s69, 16")
        e("s_lshl_b32 s66, s68, 8")
        e(f"s_or_b32 s{self.sRO}, s65, s66")
        e("s_lshl_b32 s44, s62, 13")
        e("s_xor_b32 s45, s44, 8192")
        e("s_add_u32 s46, s44, s48")
        e("s_add_u32 s47, s45, s48")
        self.dma_phase(1)
        self.tail_srds()
        e(f"s_add_u32 s65, s48, {self.slot_addr(26, 0)}")
        e("v_mov_b32 v20, s65")
        e(f"v_mov_b32 v21, {self.EX}")
        for i in range(4):
            e(f"v_mov_b32 v{24+i}, 0")
        e("v_lshlrev_b32 v22, 2, v0")
        e("v_mov_b32 v23, 1")
        e("s_mul_i32 s50, s2, 10")
        e("s_lshr_b32 s50, s50, 8")
        e("s_add_u32 s50, s50, 14")
        e("s_cmp_eq_u32 s49, 3")
        e("s_cselect_b32 s50, s50, 0")
        lead = self.o["lead"]
        d2 = self.o["d2"]
        units = []
        done = []
        for p in range(2, self.NPH):
            for upper in range(2):
                for hsel in range(2):
                    if self.PH[p][upper] is not None:
                        key = p + (1 if (lead and self.is_kv(p) and hsel) else 0)
                        units.append((key, 0 if (lead and self.is_kv(p) and hsel) else 1, p, upper, hsel))
        units = [u[2:] for u in sorted(units)]
        for ev in self.events:
            if ev[0] != "B":
                e("s_barrier")
                continue
            phi = ev[1]
            assert all(u[0] > phi for u in units)
            self.vm.need(lambda t: t <= phi)
            if not (self.o.get("dbg_nobar") and 13 <= phi <= 25):
                e("s_barrier")
            if phi == 27:
                e("ds_read_b128 v[4:7], v20")
                e("s_waitcnt lgkmcnt(0)")
                e("v_or3_b32 v4, v4, v5, v6")
                e("v_or_b32 v4, v4, v7")
                e("v_readfirstlane_b32 s65, v4")
                e("s_cmp_lg_u32 s65, 0")
                e("s_cbranch_scc1 L_safe_loader")
            if phi == 28:
                e("ds_write_b128 v21, v[24:27]")
                e("s_waitcnt lgkmcnt(0)")
            if phi == self.o.get("clrchk", 27):
                e("s_cmp_lg_u32 s49, 3")
                e("s_cbranch_scc1 L_fm_clr_done")
                e("s_lshl_b32 s65, s61, 4")
                e("v_and_b32 v2, 3, v0")
                e("v_lshlrev_b32 v2, 2, v2")
                e("s_mov_b32 s67, 0")
                e("L_fm_clr:")
                e(f"buffer_load_dword v4, v2, s[{self.sDBG}:{self.sDBG+3}], s65 offen sc0 sc1")
                e("s_add_u32 s67, s67, 1")
                e("s_cmp_gt_u32 s67, 0x40000")
                e("s_cbranch_scc1 L_fm_clr_done")
                e("s_waitcnt vmcnt(0)")
                e("v_cmp_ne_u32 vcc, 0x01010101, v4")
                e("s_nop 4")
                e("s_cbranch_vccnz L_fm_clr")
                e("L_fm_clr_done:")
            dist = 2 if phi < d2 else 3
            quota = 99
            if 12 <= phi <= 24 and self.o.get("lag", 0):
                quota = 3 if (phi - 12) % self.o["lag"] == 0 else 4
            issued = 0
            while units:
                p, upper, hsel = units[0]
                lagged = lead and self.is_kv(p) and hsel
                may = p <= phi + dist - (1 if lagged and dist == 3 else 0)
                must = p <= phi + (1 if (lagged or not self.is_kv(p)) else 2)
                if not (must or (may and issued < quota)):
                    break
                units.pop(0)
                self.dma_half(p, upper, hsel)
                done.append((p, upper, hsel))
                issued += 1
            if phi == 10:
                e("s_cmp_lg_u32 s49, 3")
                e("s_cbranch_scc1 L_noclear")
                e("s_lshl_b32 s65, s63, 8")
                e(f"buffer_store_dword v24, v22, s[{self.sIN}:{self.sIN+3}], s65 offen sc0 sc1")
                e("L_noclear:")
                self.re_units = [u for u in done if u[0] >= 10]
                e("L_re_loader:")
            if 14 <= phi <= 23:
                e(f"s_cmp_lg_u32 s50, {phi}")
                e(f"s_cbranch_scc1 L_noann{phi}")
                e("s_lshl_b32 s65, s61, 4")
                e("s_add_u32 s65, s65, s63")
                e("s_mov_b64 exec, 1")
                e(f"buffer_store_byte v23, v24, s[{self.sDBG}:{self.sDBG+3}], s65 offen sc0 sc1")
                e("s_mov_b64 exec, -1")
                e(f"L_noann{phi}:")
        e("s_cmp_eq_u32 s49, 3")
        e("s_cbranch_scc1 L_flagman")
        self.poll_flags("L_poll_l", "s49")
        e("s_xor_b32 s65, s49, s68")
        e("s_lshl_b32 s66, s65, 18")
        e("s_lshl_b32 s67, s63, 14")
        e("s_add_u32 s66, s66, s67")
        e("v_lshlrev_b32 v1, 4, v0")
        for i in range(16):
            if i % 4 == 0 and i:
                e("s_add_u32 s66, s66, 4096")
            e(f"buffer_load_dwordx4 {vr(32+4*i)}, v1, s[{self.sRD}:{self.sRD+3}], s66 offen offset:{(i%4)*1024} sc1")
        e("v_and_b32 v2, 15, v0")
        e("v_lshlrev_b32 v2, 10, v2")
        e("v_bfe_u32 v3, v0, 4, 1")
        e("v_lshl_add_u32 v2, v3, 5, v2")
        e("v_bfe_u32 v3, v0, 5, 1")
        e("v_lshl_add_u32 v2, v3, 4, v2")
        self.unit_offset("s65", "s67")
        e("s_mov_b32 s66, 0xffff0000")
        for i in range(16):
            e(f"s_waitcnt vmcnt({15-i})")
            for k in range(4):
                r = 32 + 4 * i + k
                if i == 0:
                    e(f"v_lshlrev_b32 v{8+2*k}, 16, v{r}")
                    e(f"v_and_b32 v{9+2*k}, s66, v{r}")
                else:
                    e(f"v_lshlrev_b32 v16, 16, v{r}")
                    e(f"v_and_b32 v17, s66, v{r}")
                    e(f"v_add_f32 v{8+2*k}, v{8+2*k}, v16")
                    e(f"v_add_f32 v{9+2*k}, v{9+2*k}, v17")
        for k in range(4):
            e(f"v_cvt_pk_bf16_f32 v{16+k}, v{8+2*k}, v{9+2*k}")
        e("v_permlane16_swap_b32 v16, v18")
        e("v_permlane16_swap_b32 v17, v19")
        e(f"buffer_store_dwordx4 v[16:19], v2, s[{self.sOUT}:{self.sOUT+3}], s67 offen")
        e("s_endpgm")
        e("L_flagman:")
        e("s_lshl_b32 s65, s63, 2")
        e("v_lshlrev_b32 v2, 8, v0")
        e("s_mov_b32 s66, 0")
        e("s_mov_b32 s67, 0")
        e("s_mov_b64 exec, 0xffff")
        e("L_fm_loop:")
        e("ds_read_b128 v[4:7], v21")
        e("s_add_u32 s67, s67, 1")
        e("s_waitcnt lgkmcnt(0)")
        e("v_lshrrev_b32 v4, 2, v4")
        e("v_lshrrev_b32 v5, 2, v5")
        e("v_lshrrev_b32 v6, 2, v6")
        e("v_lshrrev_b32 v7, 2, v7")
        e("v_add3_u32 v4, v4, v5, v6")
        e("v_add_u32 v4, v4, v7")
        e("v_readfirstlane_b32 s52, v4")
        e("s_cmp_gt_u32 s67, 0x400000")
        e("s_cbranch_scc1 L_end")
        e("L_fm_pub:")
        e("s_cmp_le_u32 s52, s66")
        e("s_cbranch_scc1 L_fm_loop")
        e(f"buffer_store_dword v23, v2, s[{self.sIN}:{self.sIN+3}], s65 offen sc0 sc1")
        e("s_add_u32 s65, s65, 64")
        e("s_add_u32 s66, s66, 1")
        e("s_cmp_lt_u32 s66, 4")
        e("s_cbranch_scc1 L_fm_pub")
        e("s_endpgm")
        e("L_safe_loader:")
        e("s_waitcnt vmcnt(0)")
        e("s_barrier")
        e("s_mov_b32 s67, 0")
        e("L_safe_l_loop:")
        self.dma_half(10, 0, 0, base=0, so_reg="s67")
        self.dma_half(10, 0, 1, base=0, so_reg="s67")
        e("s_waitcnt vmcnt(0)")
        e("s_barrier")
        e("s_add_u32 s67, s67, 16384")
        e("s_barrier")
        e("s_cmp_lt_u32 s67, 262144")
        e("s_cbranch_scc1 L_safe_l_loop")
        for u in self.re_units:
            self.dma_half(*u)
        e("s_waitcnt vmcnt(0)")
        e("s_barrier")
        e("s_branch L_re_loader")

    def unit_offset(self, sblk, sdst):
        e = self.e
        e(f"s_lshl_b32 {sdst}, {sblk}, 8")
        e("s_bfe_u32 s52, s63, 0x10003")
        e("s_lshl_b32 s52, s52, 7")
        e(f"s_add_u32 {sdst}, {sdst}, s52")
        e("s_bfe_u32 s52, s63, 0x10001")
        e("s_lshl_b32 s52, s52, 6")
        e(f"s_add_u32 {sdst}, {sdst}, s52")
        e("s_bfe_u32 s52, s63, 0x10002")
        e("s_lshl_b32 s52, s52, 15")
        e(f"s_add_u32 {sdst}, {sdst}, s52")
        e("s_and_b32 s52, s63, 1")
        e("s_lshl_b32 s52, s52, 14")
        e(f"s_add_u32 {sdst}, {sdst}, s52")

    def barrier(self, phi):
        if self.o.get("dbg_nobar") and 13 <= phi <= 25:
            self.events.append(("B", phi))
            self.stamp(f"B{phi}", 1 if phi in (0, 5, 10, 12, 19, 26, 28, 31) else 2)
            return
        self.lg.need(lambda t: t[0] <= phi - 1)
        self.e("s_barrier")
        self.events.append(("B", phi))
        self.stamp(f"B{phi}", 1 if phi in (0, 5, 10, 12, 19, 26, 28, 31) else 2)

    def plain_barrier(self, pred):
        self.lg.need(pred)
        self.e("s_barrier")
        self.events.append(("P",))

    def run_slots(self, slots, open_phase, tail_barrier=None, first_burst=5, after_bar={}):
        n = len(slots)
        DMAX, BOFF, RPG, WG = self.o["DMAX"], self.o["BOFF"], self.o["RPG"], self.o["WG"]
        bar_at = {}
        cur = open_phase
        prev_first = 0
        for j, s in enumerate(slots):
            if s["phase"] > cur:
                g = max(j - BOFF, prev_first)
                bar_at.setdefault(g, []).append(s["phase"])
                cur = s["phase"]
                prev_first = j
        if tail_barrier is not None:
            bar_at.setdefault(max(n - BOFF, prev_first), []).append(tail_barrier)
        opened = open_phase
        nxt = 0
        while nxt < n and "issued" in slots[nxt]:
            nxt += 1

        def issue_one():
            nonlocal nxt
            for tag, text in slots[nxt]["reads"]:
                self.e(text)
                self.lg.push(tag)
            slots[nxt]["issued"] = cur_g
            nxt += 1

        def issue_reads(g, limit):
            k = 0
            while nxt < n and k < limit and nxt - g <= DMAX and slots[nxt]["phase"] <= opened:
                issue_one()
                k += 1
        cur_g = -1
        issue_reads(-1, first_burst - nxt)
        for g, s in enumerate(slots):
            cur_g = g
            assert nxt > g, (g, nxt)
            if "label" in s:
                s["label"](slots, g, nxt)
            tags = list(s["need"])
            if any(t in tags for t in self.lg.q):
                for k in range(1, WG):
                    if g + k < n and g + k < nxt and slots[g + k]["issued"] <= g - 3:
                        tags += slots[g + k]["need"]
                    else:
                        break
                self.lg.need(lambda t: t in tags)
            ms = s["mfma"]
            self.e(ms[0])
            for f in s["fa"]:
                self.emit_fill(f)
            self.e(ms[1])
            issue_reads(g, RPG if nxt - g < DMAX - 2 else 1)
            for f in s["fb"]:
                self.emit_fill(f)
            if len(ms) > 2:
                self.e(ms[2])
            if g in bar_at:
                for phi in bar_at[g]:
                    while nxt < n and slots[nxt]["phase"] <= opened:
                        assert nxt - g <= self.NFB - 1, "frag buffer overrun"
                        issue_one()
                    self.barrier(phi)
                    opened = phi
                    if phi in after_bar:
                        after_bar[phi]()
                    issue_reads(g, RPG)

    def emit_fill(self, f):
        if callable(f):
            f()
        elif self.o.get("dbg_drop") and f.startswith(tuple(self.o["dbg_drop"].split("+"))):
            pass
        else:
            self.e(f)

    def fb(self):
        b = 4 * (self.fbi % self.NFB)
        self.fbi += 1
        return b

    def spread(self, slots, ops):
        k = 2 * len(slots)
        n = len(ops)
        for i in range(k):
            slots[i // 2]["fa" if i % 2 == 0 else "fb"] += ops[i * n // k:(i + 1) * n // k]

    def setup(self):
        e = self.e
        if self.o.get("cpf", 1):
            e("s_getpc_b64 s[98:99]")
            e("L_pc:")
            e(f"s_sub_u32 s98, s98, L_pc-{KN}")
            e("s_subb_u32 s99, s99, 0")
            e(f"v_lshl_add_u32 v1, s{self.sW}, 6, v0")
            e("v_lshlrev_b32 v1, 7, v1")
            e(f"v_mov_b32 v2, L_code_end-{KN}-4")
            for i in range(2):
                e(f"v_min_u32 v3, v1, v2")
                e(f"global_load_dword a{44+i}, v3, s[98:99]")
                e("v_add_u32 v1, 32768, v1")
            e("s_nop 0")
        if self.o["prio"]:
            e(f"s_setprio {self.o['prio']}")
        e(f"s_and_b32 s50, s{self.sW}, 1")
        e(f"s_lshr_b32 s51, s{self.sW}, 1")
        e("v_and_b32 v3, 15, v0")
        e("v_lshrrev_b32 v4, 4, v0")
        e("v_xor_b32 v1, v4, v3")
        e("v_lshlrev_b32 v1, 4, v1")
        e("v_lshl_add_u32 v1, v3, 8, v1")
        e("s_lshl_b32 s65, s50, 13")
        e("s_lshl_b32 s66, s68, 6")
        e("s_or_b32 s65, s65, s66")
        e(f"v_xor_b32 v{self.vXA}, s65, v1")
        for s in range(1, 4):
            e(f"v_xor_b32 v{self.vXA+s}, {s*64}, v{self.vXA}")
        e("v_bfe_u32 v5, v0, 4, 1")
        e("v_lshrrev_b32 v6, 5, v0")
        e("v_lshl_or_b32 v1, v5, 1, v6")
        e("v_xor_b32 v1, v1, v3")
        e("v_lshlrev_b32 v1, 4, v1")
        e(f"v_lshl_add_u32 v{self.vKA}, v3, 8, v1")
        for s in range(1, 4):
            e(f"v_xor_b32 v{self.vKA+s}, {s*64}, v{self.vKA}")
        e("v_bfe_u32 v1, v0, 2, 2")
        e("v_and_b32 v2, 1, v0")
        e("v_bfe_u32 v3, v0, 1, 1")
        e("v_lshl_or_b32 v7, v5, 2, v1")
        e("v_lshl_or_b32 v7, v7, 1, v3")
        e("v_lshlrev_b32 v7, 4, v7")
        e("v_lshl_or_b32 v7, v2, 3, v7")
        e("v_lshl_add_u32 v6, v4, 3, v1")
        e("v_lshl_add_u32 v6, v6, 9, v7")
        e("s_lshl_b32 s65, s51, 8")
        e(f"v_add_u32 v{self.vWA}, s65, v6")
        for c in range(1, 8):
            e(f"v_xor_b32 v{self.vWA+c}, {c*32}, v{self.vWA}")
        for c in range(8):
            e(f"v_add_u32 v{self.vWA+8+c}, 65536, v{self.vWA+c}")
        e("v_lshl_add_u32 v6, v4, 2, v1")
        e("v_lshl_add_u32 v6, v6, 8, v7")
        e("s_and_b32 s65, s69, 1")
        e("s_lshl_b32 s65, s65, 7")
        e("s_or_b32 s65, s65, 65536")
        e(f"v_xor_b32 v{self.vT}, s65, v6")
        e("s_lshr_b32 s65, s69, 1")
        e("s_xor_b32 s65, s65, s51")
        e("s_lshl_b32 s65, s65, 16")
        e("s_lshl_b32 s66, s51, 7")
        e("s_or_b32 s65, s65, s66")
        e(f"v_xor_b32 v{self.vT+1}, s65, v6")
        e(f"s_lshl_b32 s65, s{self.sW}, 16")
        e(f"v_lshl_add_u32 v{self.vST}, v0, 4, s65")
        e(f"s_lshl_b32 s65, s{self.sW}, 13")
        e(f"s_add_u32 s65, s65, {self.EX}")
        e(f"v_lshl_add_u32 v{self.vEXW}, v0, 4, s65")
        e(f"v_xor_b32 v{self.vEXR}, 16384, v{self.vEXW}")
        e("v_and_b32 v1, 3, v0")
        e("v_lshlrev_b32 v2, 13, v1")
        e(f"v_add_u32 v2, {self.EX}, v2")
        e("v_lshlrev_b32 v3, 11, v1")
        e(f"v_add_u32 v3, {self.slot_addr(26, 0)}, v3")
        e("v_and_b32 v1, 4, v0")
        e("v_cmp_eq_u32 vcc, 0, v1")
        e("v_cndmask_b32 v2, v3, v2, vcc")
        e(f"s_lshl_b32 s65, s{self.sW}, 2")
        e(f"v_add_u32 v{self.vFL}, s65, v2")
        for i in range(4):
            e(f"v_mov_b32 v{self.ONE+i}, 0x3f803f80")
        e(f"v_mov_b32 v{self.vMP}, 0xff800000")
        e(f"v_mov_b32 v{self.vMP+1}, 0xff800000")
        e(f"s_lshl_b32 s{self.sRS}, s68, 18")
        e("s_waitcnt lgkmcnt(0)")
        e("s_lshl_b32 s66, s61, 20")
        e("s_lshl_b32 s67, s63, 10")
        e("s_add_u32 s66, s66, s67")
        e(f"s_add_u32 s{self.sWS}, s18, s66")
        e(f"s_addc_u32 s{self.sWS+1}, s19, 0")
        e(f"s_mov_b32 s{self.sWS+2}, {(1 << 20) - 15*1024}")
        e(f"s_mov_b32 s{self.sWS+3}, 0x20000")
        self.tail_srds()

    def slot(self, phase, reads, mfma, need):
        return dict(phase=phase, reads=reads, mfma=mfma, need=need, fa=[], fb=[])

    def qproj_slots(self):
        slots = []
        xphase = {}
        XB = self.S[0]
        for phi in range(10):
            first = len(slots)
            xr = []
            for upper, item in enumerate(self.PH[phi]):
                kind, n = item[0], int(item[1:])
                base = self.slot_addr(phi, upper)
                if kind == "x":
                    for s in range(4):
                        for qq in range(2):
                            a = XB + (n % 2) * 32 + 8 * s + 4 * qq
                            xr.append(((phi, "x", n, s, qq),
                                       f"ds_read_b128 {vr(a)}, v{self.vXA+s} offset:{base+qq*4096}"))
                    xphase[n] = phi
                    continue
                for c in range(8):
                    fb = self.fb()
                    va = self.vWA + c + 8 * upper
                    o = base % 65536
                    tg = [(phi, "w", n, c, g) for g in range(2)]
                    reads = [(tg[g], f"ds_read_b64_tr_b16 {ar(fb+2*g, 2)}, v{va} offset:{o+g*4*512}") for g in range(2)]
                    ch, s = n // 4, n % 4
                    ms = []
                    for qq in range(2):
                        d = self.O + 8 * c + 4 * qq
                        a = XB + (ch % 2) * 32 + 8 * s + 4 * qq
                        ms.append(f"{MF} {vr(d)}, {ar(fb)}, {vr(a)}, {'0' if n == 0 else vr(d)}")
                    slots.append(self.slot(phi, reads, ms, tg + [(xphase[ch], "x", ch, s, qq) for qq in range(2)]))
            if xr:
                if phi == 0:
                    slots[first]["reads"] = xr[:2] + slots[first]["reads"]
                    xr = xr[2:]
                    first += 2
                for i, r in enumerate(xr):
                    slots[first + i]["reads"].insert(0, r)
        return slots

    def q_convert(self, ks):
        ops = []
        for qq in range(2):
            q = self.Q + 16 * qq + 4 * ks
            for T in range(2):
                d = self.O + 8 * (2 * ks + T) + 4 * qq
                for i in range(4):
                    ops.append(f"v_mul_f32 v{d+i}, s79, v{d+i}")
                ops.append(f"v_cvt_pk_bf16_f32 v{q+2*T}, v{d}, v{d+1}")
                ops.append(f"v_cvt_pk_bf16_f32 v{q+2*T+1}, v{d+2}, v{d+3}")
        for qq in range(2):
            q = self.Q + 16 * qq + 4 * ks
            ops.append(f"v_permlane16_swap_b32 v{q}, v{q+2}")
            ops.append(f"v_permlane16_swap_b32 v{q+1}, v{q+3}")
        return ops

    def k_slot(self, tau, kt, ks, first_c, base=None):
        phi = 10 + tau // 2
        fb = self.fb()
        tag = (phi, "k", tau, kt, ks)
        o = (self.slot_addr(phi, 0) if base is None else base) + (tau % 2) * 8192 + kt * 4096
        reads = [(tag, f"ds_read_b128 {ar(fb)}, v{self.vKA+ks} offset:{o}")]
        ms = []
        for qq in range(2):
            d = self.S[tau % 2] + 8 * qq + 4 * kt
            C = vr(d) if ks else ("0" if first_c else vr(self.C + 4 * qq))
            ms.append(f"{MF} {vr(d)}, {ar(fb)}, {vr(self.Q+16*qq+4*ks)}, {C}")
        return self.slot(phi, reads, ms, [tag])

    def v_slot(self, tau, dt):
        phi = 11 + tau // 2
        fb = self.fb()
        o = self.slot_addr(phi, 1) % 65536 + (tau % 2) * 8192
        tg = [(phi, "v", tau, dt, g) for g in range(2)]
        reads = [(tg[g], f"ds_read_b64_tr_b16 {ar(fb+2*g, 2)}, v{self.vVA+dt} offset:{o+g*4096}") for g in range(2)]
        ms = []
        for qq in range(2):
            d = self.O + 8 * dt + 4 * qq
            ms.append(f"{MF} {vr(d)}, {ar(fb)}, {vr(self.P[tau % 2]+4*qq)}, {'0' if tau == 0 else vr(d)}")
        return self.slot(phi, reads, ms, tg)

    def sum_mfma(self, tau, qq):
        d = self.LS + 4 * qq
        return f"{MF} {vr(d)}, {vr(self.ONE)}, {vr(self.P[tau % 2]+4*qq)}, {'0' if tau == 0 else vr(d)}"

    def sm_place(self, it, t, sub=False):
        r = self.S[t % 2]
        pw = self.P[t % 2]
        per = 16 // len(it)
        for j in range(16):
            s = it[j // per]
            where = "fa" if j % per == 0 else "fb"
            if sub:
                ps = it[(j - 1) // per] if j else it[0]
                pw_ = ("fa" if (j - 1) % per == 0 and per > 1 else "fb") if j else "fa"
                ps[pw_].append(f"v_sub_f32 v{r+j}, v{r+j}, v{self.vM+j//8}")
            s[where].append(f"v_exp_f32 v{r+j}, v{r+j}")
            if per == 1 and self.o.get("cvtlate", 1):
                if j >= 8:
                    k = j - 8
                    s["fb"].append(f"v_cvt_pk_bf16_f32 v{pw+k}, v{r+2*k}, v{r+2*k+1}")
            elif j >= 2 and j % 2 == 0:
                s["fb"].append(f"v_cvt_pk_bf16_f32 v{pw+j//2-1}, v{r+j-2}, v{r+j-1}")
        if not (per == 1 and self.o.get("cvtlate", 1)):
            it[-1]["fb"].append(f"v_cvt_pk_bf16_f32 v{pw+7}, v{r+14}, v{r+15}")

    def max_ops(self, regs, m, init=None):
        ops = []
        regs = list(regs)
        cur = init
        if cur is None:
            ops.append(f"v_max_f32 v{m}, v{regs[0]}, v{regs[1]}")
            regs = regs[2:]
            cur = m
        while regs:
            if len(regs) >= 2:
                ops.append(f"v_max3_f32 v{m}, v{cur}, v{regs[0]}, v{regs[1]}")
                regs = regs[2:]
            else:
                ops.append(f"v_max_f32 v{m}, v{cur}, v{regs[0]}")
                regs = regs[1:]
            cur = m
        return ops

    def xlane_max(self, m, tmp):
        return [f"v_mov_b32 v{tmp}, v{m}", f"v_permlane32_swap_b32 v{tmp}, v{m}", f"v_max_f32 v{m}, v{m}, v{tmp}",
                f"v_mov_b32 v{tmp}, v{m}", f"v_permlane16_swap_b32 v{tmp}, v{m}", f"v_max_f32 v{m}, v{m}, v{tmp}"]

    def attention_slots(self):
        slots = [self.k_slot(0, kt, ks, True) for ks in range(4) for kt in range(2)]
        s1 = [self.k_slot(1, kt, ks, True) for kt in range(2) for ks in range(4)]
        a, b = [], []
        for qq, lst in ((0, a), (1, b)):
            r = self.S[0] + 8 * qq
            lst += self.max_ops(range(r, r + 8), self.vM + qq, self.vMP + qq)
            lst += self.xlane_max(self.vM + qq, 1 + qq)
            lst += [f"v_sub_f32 v{self.C+4*qq+i}, 0, v{self.vM+qq}" for i in range(4)]
        ops = [x for p in zip(a, b) for x in p]
        self.spread(s1[1:4], ops)
        self.sm_place(s1[4:], 0, True)
        slots += s1
        for t in range(1, 31):
            it = [self.k_slot(t + 1, kt, ks, False) for kt in range(2) for ks in range(4)]
            it += [self.v_slot(t - 1, dt) for dt in range(8)]
            if t == 1:
                self.sm_place(it[4:12], t, True)
            else:
                self.sm_place(it, t)
            sp = self.o.get("sumpos", (3, 7))
            for qq in range(2):
                it[sp[qq]]["mfma"].append(self.sum_mfma(t - 1, qq))
            slots += it
        it = [self.v_slot(30, dt) for dt in range(8)]
        self.sm_place(it, 31)
        for qq in range(2):
            it[qq]["mfma"].append(self.sum_mfma(30, qq))
        slots += it
        it = [self.v_slot(31, dt) for dt in range(8)]
        for qq in range(2):
            it[qq]["mfma"].append(self.sum_mfma(31, qq))
        slots += it
        return slots

    def o_convert(self, f):
        ops = []
        for qq in range(2):
            pk = self.S[0] + 8 * f + 4 * qq
            for T in range(2):
                r = self.O + 8 * (2 * f + T) + 4 * qq
                for i in range(4):
                    ops.append(f"v_mul_f32 v{r+i}, v{1+qq}, v{r+i}")
                ops.append(f"v_cvt_pk_bf16_f32 v{pk+2*T}, v{r}, v{r+1}")
                ops.append(f"v_cvt_pk_bf16_f32 v{pk+2*T+1}, v{r+2}, v{r+3}")

            def wr(pk=pk, qq=qq):
                self.e(f"ds_write_b128 v{self.vEXW}, {vr(pk)} offset:{(2*f+qq)*1024}")
                self.lg.push((27, "ow"))
            ops.append(wr)
        return ops

    def outproj_slots(self):
        slots = []
        for pi in range(8):
            phi = 27 + pi
            blk, a = pi // 2, pi % 2
            for oth in range(2):
                for k in range(2):
                    f = 2 * a + k
                    for c in range(4):
                        fb = self.fb()
                        o = self.slot_addr(phi, 0) + k * 8192
                        tg = [(phi, "o", oth, k, c, g) for g in range(2)]
                        reads = [(tg[g], f"ds_read_b64_tr_b16 {ar(fb+2*g, 2)}, v{self.vOA+4*oth+c} offset:{o+g*4096}")
                                 for g in range(2)]
                        need = list(tg)
                        ms = []
                        for qq in range(2):
                            if oth:
                                bq = self.Q + 8 * f + 4 * qq
                                need.append((27, "of", f, qq))
                            else:
                                bq = self.S[0] + 8 * f + 4 * qq
                            d = self.O + (blk % 2) * 32 + 16 * qq + 4 * c
                            C = "0" if (a == 0 and oth == 0 and k == 0) else vr(d)
                            ms.append(f"{MF} {vr(d)}, {ar(fb)}, {vr(bq)}, {C}")
                        slots.append(self.slot(phi, reads, ms, need))
        return slots

    def store_ops(self, blk):
        ops = [f"s_xor_b32 s{self.sT}, s{self.sRS}, {blk << 18}"]
        for k in range(2):
            for qq in range(2):
                d = self.O + (blk % 2) * 32 + 16 * qq + 8 * k
                pk = self.C + (blk % 2) * 16 + 8 * k + 4 * qq
                for i in range(4):
                    ops.append(f"v_cvt_pk_bf16_f32 v{pk+i}, v{d+2*i}, v{d+2*i+1}")
                if k or qq:
                    ops.append(f"s_add_u32 s{self.sT}, s{self.sT}, 16384")

                def st(pk=pk):
                    self.e(f"buffer_store_dwordx4 {vr(pk)}, v{self.vST}, s[{self.sWS}:{self.sWS+3}], s{self.sT} offen sc1")
                    self.vm.push(blk)
                ops.append(st)
        return ops

    def ack_ops(self, blk):
        def f():
            self.vm.need(lambda t: t <= blk)
            self.e(f"ds_add_u32 v3, v4 offset:{4*blk}")
            self.lg.push((99, "ack"))
        return [f]

    def compute(self):
        e = self.e
        self.fbi = 0
        self.setup()
        if self.stamps:
            e(f"v_mov_b32 v{self.vS1}, 0")
            e(f"v_mov_b32 v{self.vS2}, 0")
            e(f"v_writelane_b32 v{self.vS1}, s70, 0")
        self.stamp("setup")
        sc = math.log2(math.e) / math.sqrt(128.0)
        e(f"s_mov_b32 s79, {f32(sc)}")
        qs = self.qproj_slots()
        at = self.attention_slots()
        os_ = self.outproj_slots()
        self.spread(qs[-4:-2], self.q_convert(0))
        self.spread(qs[-2:], self.q_convert(1))
        self.spread(at[0:2], self.q_convert(2))
        self.spread(at[2:4], self.q_convert(3))
        adr = [f"v_xor_b32 v{self.vVA+d}, {d*32}, v{self.vT}" for d in range(8)]
        adr += [f"v_xor_b32 v{self.vOA+4*o+c}, {o*65536+c*32}, v{self.vT+1}" for o in range(2) for c in range(4)]
        self.spread(at[4:8], adr)

        def re_label(slots, g, nxt):
            self.re_reads = [r for s in slots[g:nxt] for r in s["reads"]]
            assert all(s["phase"] == 10 for s in slots[g:nxt])
            e("L_re_compute:")
        at[8]["label"] = re_label
        L0, L1 = self.LS, self.LS + 4

        def vote():
            e(f"v_add_f32 v4, v{L0}, v{L1}")
            e(f"v_cmp_nlt_f32 vcc, v4, v5")
            e(f"v_rcp_f32 v1, v{L0}")
            e(f"v_rcp_f32 v2, v{L1}")
            e("s_cmp_lg_u64 vcc, 0")
            e(f"s_cselect_b32 s52, s{self.sMODE}, 0")
            e("v_mov_b32 v3, s52")
            e(f"ds_write_b32 v{self.vFL}, v3")
            self.lg.push((26, "vote"))
        at[-9]["fb"].append(f"v_mov_b32 v5, {f32(self.o['thresh'])}")
        at[-5]["fb"].append(vote)

        def after27():
            e(f"v_and_b32 v3, {~1023 & 0xffffffff}, v{self.vEXW}")
            e("ds_read_b128 v[4:7], v3")
            self.lg.push((27, "vr"))
        save = self.o["BOFF"]
        e("s_waitcnt vmcnt(0)")
        self.barrier(0)
        self.tail_boff = 4
        self.run_slots_main(qs + at, after27)
        self.stamp("attn", 1)
        for s in os_[:6]:
            for tag, text in s["reads"]:
                e(text)
                self.lg.push(tag)
            s["issued"] = -8
        self.lg.need(lambda t: t == (27, "vr"))
        e("v_or3_b32 v4, v4, v5, v6")
        e("v_or_b32 v4, v4, v7")
        e("v_readfirstlane_b32 s52, v4")
        e("s_cmp_lg_u32 s52, 0")
        e("s_cbranch_scc1 L_safe_compute")
        for op in self.o_convert(0) + self.o_convert(1):
            self.emit_fill(op)
        self.spread(os_[0:4], self.o_convert(2) + self.o_convert(3))

        def of_reads():
            self.plain_barrier(lambda t: t == (27, "ow"))
            for f in range(4):
                for qq in range(2):
                    e(f"ds_read_b128 {vr(self.Q+8*f+4*qq)}, v{self.vEXR} offset:{(2*f+qq)*1024}")
                    self.lg.push((27, "of", f, qq))
        os_[5]["fb"].append(of_reads)
        os_[6]["fb"] += [f"v_mov_b32 v3, {self.EX}", "v_mov_b32 v4, 0", "v_cmp_eq_u32 vcc, 0, v0",
                         "v_cndmask_b32 v4, 0, 1, vcc"]
        AD = self.o["ackdist"]
        for blk in range(3):
            self.spread(os_[32 * (blk + 1) + 2:32 * (blk + 1) + 8], self.store_ops(blk))
            j = 32 * (blk + 1) + 8 + AD
            if j < len(os_):
                os_[j]["fb"] += self.ack_ops(blk)
        self.run_slots(os_, 27)
        for op in self.store_ops(3):
            self.emit_fill(op)
        self.stamp("outproj", 1)
        for blk in range(4):
            if 32 * (blk + 1) + 8 + AD >= len(os_):
                for op in self.ack_ops(blk):
                    self.emit_fill(op)
        self.stamp("acked", 1)
        self.poll_flags("L_poll_c", "3")
        self.stamp("polled", 1)
        e("s_xor_b32 s65, s68, 3")
        e("s_lshl_b32 s66, s65, 18")
        e("s_lshl_b32 s67, s63, 14")
        e("s_add_u32 s66, s66, s67")
        e(f"s_lshl_b32 s67, s{self.sW}, 8")
        e("s_add_u32 s66, s66, s67")
        e("v_lshlrev_b32 v1, 2, v0")
        for i in range(16):
            if i % 4 == 0 and i:
                e("s_add_u32 s66, s66, 4096")
            e(f"buffer_load_dword v{48+i}, v1, s[{self.sRD}:{self.sRD+3}], s66 offen offset:{(i%4)*1024} sc1")
        e("v_lshrrev_b32 v2, 2, v0")
        e("v_lshlrev_b32 v2, 10, v2")
        e("v_bfe_u32 v3, v0, 1, 1")
        e("v_lshl_add_u32 v2, v3, 5, v2")
        e("v_and_b32 v3, 1, v0")
        e("v_lshl_add_u32 v2, v3, 2, v2")
        self.unit_offset("s65", "s67")
        e(f"s_lshl_b32 s52, s{self.sW}, 3")
        e("s_add_u32 s67, s67, s52")
        e("s_mov_b32 s66, 0xffff0000")
        for i in range(16):
            e(f"s_waitcnt vmcnt({15-i})")
            if i == 0:
                e("v_lshlrev_b32 v4, 16, v48")
                e("v_and_b32 v5, s66, v48")
            else:
                e(f"v_lshlrev_b32 v6, 16, v{48+i}")
                e(f"v_and_b32 v7, s66, v{48+i}")
                e("v_add_f32 v4, v4, v6")
                e("v_add_f32 v5, v5, v7")
        e("v_cvt_pk_bf16_f32 v4, v4, v5")
        e(f"buffer_store_dword v4, v2, s[{self.sOUT}:{self.sOUT+3}], s67 offen")
        self.stamp("reduced", 1)
        if self.stamps:
            e("s_waitcnt vmcnt(0)")
            self.stamp("drain", 1)
            e("s_add_u32 s44, s18, 0x2000000")
            e("s_addc_u32 s45, s19, 0")
            e("s_mov_b32 s46, 0x4000000")
            e("s_mov_b32 s47, 0x20000")
            e("s_mul_i32 s65, s2, 4")
            e(f"s_add_u32 s65, s65, s{self.sW}")
            e("s_mul_i32 s65, s65, 512")
            e("v_lshlrev_b32 v1, 2, v0")
            e("s_getreg_b32 s66, hwreg(HW_REG_XCC_ID)")
            e(f"v_writelane_b32 v{self.vS1}, s66, 63")
            e(f"buffer_store_dword v{self.vS1}, v1, s[44:47], s65 offen")
            e(f"buffer_store_dword v{self.vS2}, v1, s[44:47], s65 offen offset:256")
        e("L_end:")
        e("s_endpgm")
        e("L_safe_compute:")
        e("s_waitcnt lgkmcnt(0)")
        e("s_barrier")
        e(f"s_mov_b32 s{self.sMODE}, 0")
        e("s_mov_b32 s67, 0")
        e("L_safe_c_loop:")
        e("s_barrier")
        self.fbi = 0
        for tau in range(2):
            ks_ = [self.k_slot(tau, kt, ks, True, base=0) for kt in range(2) for ks in range(4)]
            for s in ks_:
                e(s["reads"][0][1])
            e("s_waitcnt lgkmcnt(0)")
            for s in ks_:
                e(s["mfma"][0])
                e(s["mfma"][1])
            e("s_nop 7")
            self.fbi = 0
        e("s_barrier")
        for qq in range(2):
            regs = [self.S[tau] + 8 * qq + i for tau in range(2) for i in range(8)]
            for op in self.max_ops(regs, self.vMP + qq, self.vMP + qq):
                e(op)
        e("s_add_u32 s67, s67, 1")
        e("s_cmp_lt_u32 s67, 16")
        e("s_cbranch_scc1 L_safe_c_loop")
        e("s_barrier")
        ks_ = [self.k_slot(0, kt, ks, True) for kt in range(2) for ks in range(4)]
        for s in ks_:
            e(s["reads"][0][1])
        e("s_waitcnt lgkmcnt(0)")
        for s in ks_:
            e(s["mfma"][0])
            e(s["mfma"][1])
        e("s_nop 7")
        for tag, text in self.re_reads:
            e(text)
        e("s_waitcnt lgkmcnt(0)")
        e("s_branch L_re_compute")

    def run_slots_main(self, slots, after27):
        n = len(slots)
        extra = self.slot(27, [], [], [])
        save = self.o["BOFF"]
        self._tail_gap = n - 4
        self.run_slots_tail(slots, after27)

    def run_slots_tail(self, slots, after27):
        def bar():
            assert all("issued" in x for x in slots)
            self.barrier(27)
            after27()
        slots[self._tail_gap]["fb"].append(bar)
        self.run_slots(slots, 0)

    def main_kernel(self):
        self.events = []
        self.prologue()
        self.compute()
        self.loader()
        self.e("L_code_end:")
        return hazard_pass(self.L)


def kd(name, vgpr, accum, sgpr=102):
    return f""".amdhsa_kernel {name}
  .amdhsa_next_free_vgpr {vgpr}
  .amdhsa_next_free_sgpr {sgpr}
  .amdhsa_accum_offset {accum}
  .amdhsa_group_segment_fixed_size 0
  .amdhsa_kernarg_size 64
  .amdhsa_user_sgpr_count 2
  .amdhsa_user_sgpr_kernarg_segment_ptr 1
  .amdhsa_system_sgpr_workgroup_id_x 1
.end_amdhsa_kernel
"""


def build(stamps=0, opts=None):
    g = Gen(stamps, opts)
    body, added = g.main_kernel()
    txt = HEADER
    txt += "; @launch grid=(256,1,1) block=(512,1,1) lds=163840\n"
    txt += '.amdgcn_target "amdgcn-amd-amdhsa--gfx950"\n.text\n'
    txt += f".globl {KN}\n.p2align 8\n.type {KN},@function\n{KN}:\n" + "\n".join(body) + "\n"
    txt += '.section .rodata,"a"\n.p2align 6\n' + kd(KN, 256, g.ACC)
    txt += "; stamps: " + " ".join(g.stamp_names) + "\n"
    return txt, added


if __name__ == "__main__":
    import argparse
    ap = argparse.ArgumentParser()
    ap.add_argument("out")
    ap.add_argument("--stamps", type=int, default=0)
    ap.add_argument("--opt", action="append", default=[])
    a = ap.parse_args()
    opts = {}
    for o in a.opt:
        k, v = o.split("=")
        try:
            opts[k] = int(v)
        except ValueError:
            try:
                opts[k] = float(v)
            except ValueError:
                opts[k] = v
    txt, added = build(a.stamps, opts)
    open(a.out, "w").write(txt)
    print("wrote", a.out, "lines", txt.count("\n"), "nop states added", added)
```

```python
import math
import struct
from asmlib import hazard_pass, Queue

KN = "standalone__gqa_block_cached__near_ridge_kernel"
HEADER = """; Kernarg layout for this problem (64 bytes, ptrs only, base s[0:1]):
"""


def f32(x):
    return "0x%08x" % struct.unpack("<I", struct.pack("<f", x))[0]


MF = "v_mfma_f32_16x16x32_bf16"


def vr(a, n=4):
    return f"v[{a}:{a+n-1}]"


def ar(a, n=4):
    return f"a[{a}:{a+n-1}]"


class Gen:
    def __init__(self, stamps=0, opts=None):
        self.stamps = stamps
        self.o = dict(DMAX=10, BOFF=6, RPG=2, WG=4, kv_flags="nt", w_flags="nt", o_flags="", x_flags="", lead=0, prio=1, d2=3,
                      thresh=2.0 ** 60, ackdist=60)
        self.o.update(opts or {})
        self.L = []
        self.lg = Queue("lgkmcnt", 15, self.e)
        self.vm = Queue("vmcnt", 63, self.e)
        self.nstamp = 0
        self.stamp_names = ["start"]
        self.vKA, self.vXA = 8, 12
        self.vWA = 16
        self.vVA, self.vOA = 16, 24
        self.vST, self.vEXW, self.vEXR, self.vFL = 32, 33, 34, 35
        self.vM, self.vMP = 36, 38
        self.vS1, self.vS2 = 40, 41
        self.vT = 42
        self.ONE = 44
        b = 48
        self.S = [b, b + 16]
        self.C = b + 32
        self.P = [b + 40, b + 48]
        self.LS = b + 56
        self.O = b + 64
        self.Q = b + 128
        self.ACC = b + 160
        self.NFB = 12
        self.sX, self.sWQ, self.sK, self.sV, self.sWO, self.sWS = 20, 24, 28, 32, 36, 40
        self.sDBG, self.sOUT, self.sRD, self.sIN = 80, 84, 88, 92
        self.sW = 3
        self.sT = 53
        self.sRW, self.sRX, self.sRO, self.sRS = 56, 57, 58, 59
        self.sMODE = 78
        self.EX = 131072
        self.PH = self.phases()
        self.NPH = len(self.PH)

    def e(self, s):
        self.L.append(s if s.startswith("    ") or s.endswith(":") else "    " + s)

    def slot_addr(self, phi, upper):
        return (65536 if upper else 0) + (phi % 4) * 16384

    def stamp(self, name="", level=1):
        if not self.stamps or level > self.stamps:
            return
        i = self.nstamp
        self.nstamp += 1
        assert i < 61
        self.stamp_names.append(name)
        self.lg.drain()
        self.e("s_memrealtime s[72:73]")
        self.e("s_memtime s[74:75]")
        self.e("s_waitcnt lgkmcnt(0)")
        self.e(f"v_writelane_b32 v{self.vS1}, s72, {i+1}")
        self.e(f"v_writelane_b32 v{self.vS2}, s74, {i+1}")

    def phases(self):
        ph = [("x0", "w0"), ("x1", "w1"), ("w2", "w3"), ("w4", "w5"), ("x2", "w6"), ("w7", "w8"),
              ("w9", "w10"), ("x3", "w11"), ("w12", "w13"), ("w14", "w15"), ("K0", None)]
        for j in range(1, 16):
            ph.append((f"K{j}", f"V{j-1}"))
        ph.append((None, "V15"))
        for blk in range(4):
            for a in range(2):
                ph.append((f"o{4*blk+a}", f"o{4*blk+a+2}"))
        return ph

    def prologue(self):
        e = self.e
        e("s_cmp_ge_u32 s2, 256")
        e("s_cbranch_scc1 L_end")
        if self.stamps:
            e("s_memrealtime s[70:71]")
        e("s_load_dwordx16 s[4:19], s[0:1], 0")
        e("v_lshrrev_b32 v1, 6, v0")
        e("v_and_b32 v0, 63, v0")
        e(f"v_readfirstlane_b32 s{self.sW}, v1")
        e("s_and_b32 s60, s2, 7")
        e("s_lshr_b32 s61, s2, 4")
        e("s_bfe_u32 s62, s2, 0x10003")
        e("s_lshl_b32 s63, s60, 1")
        e("s_add_u32 s63, s63, s62")
        e("s_lshl_b32 s64, s61, 3")
        e("s_add_u32 s64, s64, s60")
        e("s_and_b32 s68, s61, 3")
        e("s_lshr_b32 s69, s61, 2")
        e("s_and_b32 s76, s60, 3")
        e("s_lshl_b32 s77, s62, 1")
        e("s_xor_b32 s76, s76, s77")
        e("s_xor_b32 s77, s76, s69")
        e("s_lshl_b32 s76, s76, 2")
        e("s_xor_b32 s76, s76, s61")
        e(f"s_mov_b32 s{self.sMODE}, {0 if self.o.get('dbg_nodma') else 1}")
        e(f"s_cmp_ge_u32 s{self.sW}, 4")
        e("s_cbranch_scc1 L_loader")

    def srd(self, s, lo, off_s, shift, nrec):
        e = self.e
        if off_s is None:
            e(f"s_mov_b32 s{s}, s{lo}")
            e(f"s_mov_b32 s{s+1}, s{lo+1}")
        else:
            e(f"s_lshl_b32 s66, s{off_s}, {shift}")
            e(f"s_add_u32 s{s}, s{lo}, s66")
            e(f"s_addc_u32 s{s+1}, s{lo+1}, 0")
        e(f"s_mov_b32 s{s+2}, {nrec}")
        e(f"s_mov_b32 s{s+3}, 0x20000")

    def tail_srds(self):
        self.srd(self.sDBG, 16, None, 0, 256)
        self.srd(self.sRD, 18, 61, 20, 1 << 20)
        self.srd(self.sOUT, 14, 61, 16, 65536)
        e = self.e
        e("s_lshl_b32 s66, s61, 12")
        e("s_add_u32 s66, s66, 0x1000000")
        e(f"s_add_u32 s{self.sIN}, s18, s66")
        e(f"s_addc_u32 s{self.sIN+1}, s19, 0")
        e(f"s_mov_b32 s{self.sIN+2}, 4096")
        e(f"s_mov_b32 s{self.sIN+3}, 0x20000")

    def dma_half(self, phi, upper, hsel, base=None, so_reg=None):
        item = self.PH[phi][upper]
        if item is None:
            return
        if self.o.get("dbg_nodma") and 16 <= phi <= 26:
            return
        e = self.e
        kind, n = item[0], int(item[1:])
        if base is None:
            base = self.slot_addr(phi, upper)
        if kind == "x":
            srd, vo, so, rs, hs, fl = self.sX, [8, 9], n * 256, self.sRX, 32768, "x_flags"
        elif kind == "w":
            srd, vo, so, rs, hs, fl = self.sWQ, [10, 11], n * 32 * 8192, self.sRW, 16 * 8192, "w_flags"
        elif kind == "K":
            srd, vo, so, rs, hs, fl = self.sK, [12, 13], n * 16384, None, 8192, "kv_flags"
        elif kind == "V":
            srd, vo, so, rs, hs, fl = self.sV, [14, 15], n * 16384, None, 8192, "kv_flags"
        else:
            srd, vo, so, rs, hs, fl = self.sWO, [16, 17], (n % 4) * 65536 + (n // 4) * 256, self.sRO, 32768, "o_flags"
        fl = self.o[fl].replace("+", " ")
        st = self.sT
        if rs is None:
            e(f"s_add_u32 m0, s{46+hsel}, {base}")
            e(f"s_add_u32 s{st}, s{44+hsel}, {so if so_reg is None else so_reg}")
        else:
            e(f"s_add_u32 m0, s48, {base+hsel*8192}")
            e(f"s_xor_b32 s{st}, s{rs}, {so+hsel*hs}")
        e(f"buffer_load_dwordx4 v{vo[0]}, s[{srd}:{srd+3}], s{st} offen {fl} lds")
        e(f"buffer_load_dwordx4 v{vo[1]}, s[{srd}:{srd+3}], s{st} offen offset:1024 {fl} lds")
        self.vm.push(phi)
        self.vm.push(phi)

    def is_kv(self, phi):
        return 10 <= phi <= 26

    def dma_phase(self, phi, which=(0, 1)):
        if phi >= self.NPH:
            return
        for upper in range(2):
            for hsel in which:
                self.dma_half(phi, upper, hsel)

    def poll_flags(self, lab, row):
        e = self.e
        e("s_lshl_b32 s65, s63, 8")
        e(f"s_lshl_b32 s66, {row}, 6")
        e("s_add_u32 s65, s65, s66")
        e("v_and_b32 v2, 15, v0")
        e("v_lshlrev_b32 v2, 2, v2")
        e("s_mov_b32 s67, 0")
        e(f"{lab}:")
        e(f"buffer_load_dword v4, v2, s[{self.sIN}:{self.sIN+3}], s65 offen sc0 sc1")
        e("s_add_u32 s67, s67, 1")
        e("s_cmp_gt_u32 s67, 0x40000")
        e(f"s_cbranch_scc1 {lab}_done")
        e("s_waitcnt vmcnt(0)")
        e("v_cmp_eq_u32 vcc, 0, v4")
        e("s_nop 4")
        e(f"s_cbranch_vccnz {lab}")
        e(f"{lab}_done:")
        e("s_waitcnt vmcnt(0)")

    def loader(self):
        e = self.e
        self.vm.q = []
        e("L_loader:")
        e(f"s_sub_u32 s49, s{self.sW}, 4")
        e("s_lshl_b32 s48, s49, 11")
        e(f"s_lshl_b32 s{self.sRW}, s76, 18")
        e(f"s_lshl_b32 s{self.sRX}, s77, 8")
        e("v_lshrrev_b32 v2, 4, v0")
        e("v_and_b32 v3, 15, v0")
        e("v_lshrrev_b32 v4, 5, v0")
        e("v_and_b32 v5, 31, v0")
        e("s_and_b32 s65, s49, 1")
        e("s_lshl_b32 s65, s65, 3")
        e("v_or_b32 v6, s65, v2")
        e("v_xor_b32 v6, v6, v3")
        e("v_lshlrev_b32 v6, 4, v6")
        e("s_lshl_b32 s65, s49, 3")
        e("v_add_u32 v7, s65, v2")
        e("v_lshl_add_u32 v8, v7, 10, v6")
        e("v_xor_b32 v9, 64, v8")
        e("v_add_u32 v9, 3072, v9")
        e("s_lshl_b32 s65, s49, 2")
        e("v_add_u32 v18, s65, v4")
        e("s_lshr_b32 s65, s49, 1")
        e("s_lshl_b32 s65, s65, 3")
        e("v_lshl_or_b32 v19, v4, 1, s65")
        e("v_xor_b32 v19, v19, v5")
        e("v_lshlrev_b32 v19, 4, v19")
        e("v_lshl_add_u32 v10, v18, 13, v19")
        e("v_xor_b32 v11, 64, v10")
        e(f"v_add_u32 v11, {16384-1024}, v11")
        e("s_waitcnt lgkmcnt(0)")
        if self.o.get("wsoff"):
            e(f"s_add_u32 s18, s18, {self.o['wsoff'] << 20}")
            e("s_addc_u32 s19, s19, 0")
        self.srd(self.sX, 4, 61, 16, 65536)
        self.srd(self.sWQ, 10, 63, 9, 511 * 8192 + 512)
        self.dma_phase(0)
        self.srd(self.sK, 6, 64, 18, 262144)
        self.srd(self.sV, 8, 64, 18, 262144)
        self.srd(self.sWO, 12, 63, 18, 262144)
        e("v_lshl_add_u32 v12, v7, 8, v6")
        e("v_xor_b32 v13, 64, v12")
        e("v_lshlrev_b32 v18, 1, v2")
        e("v_xor_b32 v18, v18, v3")
        e("v_lshlrev_b32 v18, 4, v18")
        e("v_lshl_add_u32 v14, v7, 8, v18")
        e("v_xor_b32 v15, 128, v14")
        e("v_lshl_add_u32 v16, v7, 10, v18")
        e("v_xor_b32 v17, 128, v16")
        e("v_add_u32 v17, 3072, v17")
        e("s_lshl_b32 s65, s69, 16")
        e("s_lshl_b32 s66, s68, 8")
        e(f"s_or_b32 s{self.sRO}, s65, s66")
        e("s_lshl_b32 s44, s62, 13")
        e("s_xor_b32 s45, s44, 8192")
        e("s_add_u32 s46, s44, s48")
        e("s_add_u32 s47, s45, s48")
        self.dma_phase(1)
        self.tail_srds()
        e(f"s_add_u32 s65, s48, {self.slot_addr(26, 0)}")
        e("v_mov_b32 v20, s65")
        e(f"v_mov_b32 v21, {self.EX}")
        for i in range(4):
            e(f"v_mov_b32 v{24+i}, 0")
        e("v_lshlrev_b32 v22, 2, v0")
        e("v_mov_b32 v23, 1")
        e("s_mul_i32 s50, s2, 10")
        e("s_lshr_b32 s50, s50, 8")
        e("s_add_u32 s50, s50, 14")
        e("s_cmp_eq_u32 s49, 3")
        e("s_cselect_b32 s50, s50, 0")
        lead = self.o["lead"]
        d2 = self.o["d2"]
        units = []
        done = []
        for p in range(2, self.NPH):
            for upper in range(2):
                for hsel in range(2):
                    if self.PH[p][upper] is not None:
                        key = p + (1 if (lead and self.is_kv(p) and hsel) else 0)
                        units.append((key, 0 if (lead and self.is_kv(p) and hsel) else 1, p, upper, hsel))
        units = [u[2:] for u in sorted(units)]
        for ev in self.events:
            if ev[0] != "B":
                e("s_barrier")
                continue
            phi = ev[1]
            assert all(u[0] > phi for u in units)
            self.vm.need(lambda t: t <= phi)
            if not (self.o.get("dbg_nobar") and 13 <= phi <= 25):
                e("s_barrier")
            if phi == 27:
                e("ds_read_b128 v[4:7], v20")
                e("s_waitcnt lgkmcnt(0)")
                e("v_or3_b32 v4, v4, v5, v6")
                e("v_or_b32 v4, v4, v7")
                e("v_readfirstlane_b32 s65, v4")
                e("s_cmp_lg_u32 s65, 0")
                e("s_cbranch_scc1 L_safe_loader")
            if phi == 28:
                e("ds_write_b128 v21, v[24:27]")
                e("s_waitcnt lgkmcnt(0)")
            if phi == self.o.get("clrchk", 27):
                e("s_cmp_lg_u32 s49, 3")
                e("s_cbranch_scc1 L_fm_clr_done")
                e("s_lshl_b32 s65, s61, 4")
                e("v_and_b32 v2, 3, v0")
                e("v_lshlrev_b32 v2, 2, v2")
                e("s_mov_b32 s67, 0")
                e("L_fm_clr:")
                e(f"buffer_load_dword v4, v2, s[{self.sDBG}:{self.sDBG+3}], s65 offen sc0 sc1")
                e("s_add_u32 s67, s67, 1")
                e("s_cmp_gt_u32 s67, 0x40000")
                e("s_cbranch_scc1 L_fm_clr_done")
                e("s_waitcnt vmcnt(0)")
                e("v_cmp_ne_u32 vcc, 0x01010101, v4")
                e("s_nop 4")
                e("s_cbranch_vccnz L_fm_clr")
                e("L_fm_clr_done:")
            dist = 2 if phi < d2 else 3
            quota = 99
            if 12 <= phi <= 24 and self.o.get("lag", 0):
                quota = 3 if (phi - 12) % self.o["lag"] == 0 else 4
            issued = 0
            while units:
                p, upper, hsel = units[0]
                lagged = lead and self.is_kv(p) and hsel
                may = p <= phi + dist - (1 if lagged and dist == 3 else 0)
                must = p <= phi + (1 if (lagged or not self.is_kv(p)) else 2)
                if not (must or (may and issued < quota)):
                    break
                units.pop(0)
                self.dma_half(p, upper, hsel)
                done.append((p, upper, hsel))
                issued += 1
            if phi == 10:
                e("s_cmp_lg_u32 s49, 3")
                e("s_cbranch_scc1 L_noclear")
                e("s_lshl_b32 s65, s63, 8")
                e(f"buffer_store_dword v24, v22, s[{self.sIN}:{self.sIN+3}], s65 offen sc0 sc1")
                e("L_noclear:")
                self.re_units = [u for u in done if u[0] >= 10]
                e("L_re_loader:")
            if 14 <= phi <= 23:
                e(f"s_cmp_lg_u32 s50, {phi}")
                e(f"s_cbranch_scc1 L_noann{phi}")
                e("s_lshl_b32 s65, s61, 4")
                e("s_add_u32 s65, s65, s63")
                e("s_mov_b64 exec, 1")
                e(f"buffer_store_byte v23, v24, s[{self.sDBG}:{self.sDBG+3}], s65 offen sc0 sc1")
                e("s_mov_b64 exec, -1")
                e(f"L_noann{phi}:")
        e("s_cmp_eq_u32 s49, 3")
        e("s_cbranch_scc1 L_flagman")
        self.poll_flags("L_poll_l", "s49")
        e("s_xor_b32 s65, s49, s68")
        e("s_lshl_b32 s66, s65, 18")
        e("s_lshl_b32 s67, s63, 14")
        e("s_add_u32 s66, s66, s67")
        e("v_lshlrev_b32 v1, 4, v0")
        for i in range(16):
            if i % 4 == 0 and i:
                e("s_add_u32 s66, s66, 4096")
            e(f"buffer_load_dwordx4 {vr(32+4*i)}, v1, s[{self.sRD}:{self.sRD+3}], s66 offen offset:{(i%4)*1024} sc1")
        e("v_and_b32 v2, 15, v0")
        e("v_lshlrev_b32 v2, 10, v2")
        e("v_bfe_u32 v3, v0, 4, 1")
        e("v_lshl_add_u32 v2, v3, 5, v2")
        e("v_bfe_u32 v3, v0, 5, 1")
        e("v_lshl_add_u32 v2, v3, 4, v2")
        self.unit_offset("s65", "s67")
        e("s_mov_b32 s66, 0xffff0000")
        for i in range(16):
            e(f"s_waitcnt vmcnt({15-i})")
            for k in range(4):
                r = 32 + 4 * i + k
                if i == 0:
                    e(f"v_lshlrev_b32 v{8+2*k}, 16, v{r}")
                    e(f"v_and_b32 v{9+2*k}, s66, v{r}")
                else:
                    e(f"v_lshlrev_b32 v16, 16, v{r}")
                    e(f"v_and_b32 v17, s66, v{r}")
                    e(f"v_add_f32 v{8+2*k}, v{8+2*k}, v16")
                    e(f"v_add_f32 v{9+2*k}, v{9+2*k}, v17")
        for k in range(4):
            e(f"v_cvt_pk_bf16_f32 v{16+k}, v{8+2*k}, v{9+2*k}")
        e("v_permlane16_swap_b32 v16, v18")
        e("v_permlane16_swap_b32 v17, v19")
        e(f"buffer_store_dwordx4 v[16:19], v2, s[{self.sOUT}:{self.sOUT+3}], s67 offen")
        e("s_endpgm")
        e("L_flagman:")
        e("s_lshl_b32 s65, s63, 2")
        e("v_lshlrev_b32 v2, 8, v0")
        e("s_mov_b32 s66, 0")
        e("s_mov_b32 s67, 0")
        e("s_mov_b64 exec, 0xffff")
        e("L_fm_loop:")
        e("ds_read_b128 v[4:7], v21")
        e("s_add_u32 s67, s67, 1")
        e("s_waitcnt lgkmcnt(0)")
        e("v_lshrrev_b32 v4, 2, v4")
        e("v_lshrrev_b32 v5, 2, v5")
        e("v_lshrrev_b32 v6, 2, v6")
        e("v_lshrrev_b32 v7, 2, v7")
        e("v_add3_u32 v4, v4, v5, v6")
        e("v_add_u32 v4, v4, v7")
        e("v_readfirstlane_b32 s52, v4")
        e("s_cmp_gt_u32 s67, 0x400000")
        e("s_cbranch_scc1 L_end")
        e("L_fm_pub:")
        e("s_cmp_le_u32 s52, s66")
        e("s_cbranch_scc1 L_fm_loop")
        e(f"buffer_store_dword v23, v2, s[{self.sIN}:{self.sIN+3}], s65 offen sc0 sc1")
        e("s_add_u32 s65, s65, 64")
        e("s_add_u32 s66, s66, 1")
        e("s_cmp_lt_u32 s66, 4")
        e("s_cbranch_scc1 L_fm_pub")
        e("s_endpgm")
        e("L_safe_loader:")
        e("s_waitcnt vmcnt(0)")
        e("s_barrier")
        e("s_mov_b32 s67, 0")
        e("L_safe_l_loop:")
        self.dma_half(10, 0, 0, base=0, so_reg="s67")
        self.dma_half(10, 0, 1, base=0, so_reg="s67")
        e("s_waitcnt vmcnt(0)")
        e("s_barrier")
        e("s_add_u32 s67, s67, 16384")
        e("s_barrier")
        e("s_cmp_lt_u32 s67, 262144")
        e("s_cbranch_scc1 L_safe_l_loop")
        for u in self.re_units:
            self.dma_half(*u)
        e("s_waitcnt vmcnt(0)")
        e("s_barrier")
        e("s_branch L_re_loader")

    def unit_offset(self, sblk, sdst):
        e = self.e
        e(f"s_lshl_b32 {sdst}, {sblk}, 8")
        e("s_bfe_u32 s52, s63, 0x10003")
        e("s_lshl_b32 s52, s52, 7")
        e(f"s_add_u32 {sdst}, {sdst}, s52")
        e("s_bfe_u32 s52, s63, 0x10001")
        e("s_lshl_b32 s52, s52, 6")
        e(f"s_add_u32 {sdst}, {sdst}, s52")
        e("s_bfe_u32 s52, s63, 0x10002")
        e("s_lshl_b32 s52, s52, 15")
        e(f"s_add_u32 {sdst}, {sdst}, s52")
        e("s_and_b32 s52, s63, 1")
        e("s_lshl_b32 s52, s52, 14")
        e(f"s_add_u32 {sdst}, {sdst}, s52")

    def barrier(self, phi):
        if self.o.get("dbg_nobar") and 13 <= phi <= 25:
            self.events.append(("B", phi))
            self.stamp(f"B{phi}", 1 if phi in (0, 5, 10, 12, 19, 26, 28, 31) else 2)
            return
        self.lg.need(lambda t: t[0] <= phi - 1)
        self.e("s_barrier")
        self.events.append(("B", phi))
        self.stamp(f"B{phi}", 1 if phi in (0, 5, 10, 12, 19, 26, 28, 31) else 2)

    def plain_barrier(self, pred):
        self.lg.need(pred)
        self.e("s_barrier")
        self.events.append(("P",))

    def run_slots(self, slots, open_phase, tail_barrier=None, first_burst=5, after_bar={}):
        n = len(slots)
        DMAX, BOFF, RPG, WG = self.o["DMAX"], self.o["BOFF"], self.o["RPG"], self.o["WG"]
        bar_at = {}
        cur = open_phase
        prev_first = 0
        for j, s in enumerate(slots):
            if s["phase"] > cur:
                g = max(j - BOFF, prev_first)
                bar_at.setdefault(g, []).append(s["phase"])
                cur = s["phase"]
                prev_first = j
        if tail_barrier is not None:
            bar_at.setdefault(max(n - BOFF, prev_first), []).append(tail_barrier)
        opened = open_phase
        nxt = 0
        while nxt < n and "issued" in slots[nxt]:
            nxt += 1

        def issue_one():
            nonlocal nxt
            for tag, text in slots[nxt]["reads"]:
                self.e(text)
                self.lg.push(tag)
            slots[nxt]["issued"] = cur_g
            nxt += 1

        def issue_reads(g, limit):
            k = 0
            while nxt < n and k < limit and nxt - g <= DMAX and slots[nxt]["phase"] <= opened:
                issue_one()
                k += 1
        cur_g = -1
        issue_reads(-1, first_burst - nxt)
        for g, s in enumerate(slots):
            cur_g = g
            assert nxt > g, (g, nxt)
            if "label" in s:
                s["label"](slots, g, nxt)
            tags = list(s["need"])
            if any(t in tags for t in self.lg.q):
                for k in range(1, WG):
                    if g + k < n and g + k < nxt and slots[g + k]["issued"] <= g - 3:
                        tags += slots[g + k]["need"]
                    else:
                        break
                self.lg.need(lambda t: t in tags)
            ms = s["mfma"]
            self.e(ms[0])
            for f in s["fa"]:
                self.emit_fill(f)
            self.e(ms[1])
            issue_reads(g, RPG if nxt - g < DMAX - 2 else 1)
            for f in s["fb"]:
                self.emit_fill(f)
            if len(ms) > 2:
                self.e(ms[2])
            if g in bar_at:
                for phi in bar_at[g]:
                    while nxt < n and slots[nxt]["phase"] <= opened:
                        assert nxt - g <= self.NFB - 1, "frag buffer overrun"
                        issue_one()
                    self.barrier(phi)
                    opened = phi
                    if phi in after_bar:
                        after_bar[phi]()
                    issue_reads(g, RPG)

    def emit_fill(self, f):
        if callable(f):
            f()
        elif self.o.get("dbg_drop") and f.startswith(tuple(self.o["dbg_drop"].split("+"))):
            pass
        else:
            self.e(f)

    def fb(self):
        b = 4 * (self.fbi % self.NFB)
        self.fbi += 1
        return b

    def spread(self, slots, ops):
        k = 2 * len(slots)
        n = len(ops)
        for i in range(k):
            slots[i // 2]["fa" if i % 2 == 0 else "fb"] += ops[i * n // k:(i + 1) * n // k]

    def setup(self):
        e = self.e
        if self.o.get("cpf", 1):
            e("s_getpc_b64 s[98:99]")
            e("L_pc:")
            e(f"s_sub_u32 s98, s98, L_pc-{KN}")
            e("s_subb_u32 s99, s99, 0")
            e(f"v_lshl_add_u32 v1, s{self.sW}, 6, v0")
            e("v_lshlrev_b32 v1, 7, v1")
            e(f"v_mov_b32 v2, L_code_end-{KN}-4")
            for i in range(2):
                e(f"v_min_u32 v3, v1, v2")
                e(f"global_load_dword a{44+i}, v3, s[98:99]")
                e("v_add_u32 v1, 32768, v1")
            e("s_nop 0")
        if self.o["prio"]:
            e(f"s_setprio {self.o['prio']}")
        e(f"s_and_b32 s50, s{self.sW}, 1")
        e(f"s_lshr_b32 s51, s{self.sW}, 1")
        e("v_and_b32 v3, 15, v0")
        e("v_lshrrev_b32 v4, 4, v0")
        e("v_xor_b32 v1, v4, v3")
        e("v_lshlrev_b32 v1, 4, v1")
        e("v_lshl_add_u32 v1, v3, 8, v1")
        e("s_lshl_b32 s65, s50, 13")
        e("s_lshl_b32 s66, s68, 6")
        e("s_or_b32 s65, s65, s66")
        e(f"v_xor_b32 v{self.vXA}, s65, v1")
        for s in range(1, 4):
            e(f"v_xor_b32 v{self.vXA+s}, {s*64}, v{self.vXA}")
        e("v_bfe_u32 v5, v0, 4, 1")
        e("v_lshrrev_b32 v6, 5, v0")
        e("v_lshl_or_b32 v1, v5, 1, v6")
        e("v_xor_b32 v1, v1, v3")
        e("v_lshlrev_b32 v1, 4, v1")
        e(f"v_lshl_add_u32 v{self.vKA}, v3, 8, v1")
        for s in range(1, 4):
            e(f"v_xor_b32 v{self.vKA+s}, {s*64}, v{self.vKA}")
        e("v_bfe_u32 v1, v0, 2, 2")
        e("v_and_b32 v2, 1, v0")
        e("v_bfe_u32 v3, v0, 1, 1")
        e("v_lshl_or_b32 v7, v5, 2, v1")
        e("v_lshl_or_b32 v7, v7, 1, v3")
        e("v_lshlrev_b32 v7, 4, v7")
        e("v_lshl_or_b32 v7, v2, 3, v7")
        e("v_lshl_add_u32 v6, v4, 3, v1")
        e("v_lshl_add_u32 v6, v6, 9, v7")
        e("s_lshl_b32 s65, s51, 8")
        e(f"v_add_u32 v{self.vWA}, s65, v6")
        for c in range(1, 8):
            e(f"v_xor_b32 v{self.vWA+c}, {c*32}, v{self.vWA}")
        for c in range(8):
            e(f"v_add_u32 v{self.vWA+8+c}, 65536, v{self.vWA+c}")
        e("v_lshl_add_u32 v6, v4, 2, v1")
        e("v_lshl_add_u32 v6, v6, 8, v7")
        e("s_and_b32 s65, s69, 1")
        e("s_lshl_b32 s65, s65, 7")
        e("s_or_b32 s65, s65, 65536")
        e(f"v_xor_b32 v{self.vT}, s65, v6")
        e("s_lshr_b32 s65, s69, 1")
        e("s_xor_b32 s65, s65, s51")
        e("s_lshl_b32 s65, s65, 16")
        e("s_lshl_b32 s66, s51, 7")
        e("s_or_b32 s65, s65, s66")
        e(f"v_xor_b32 v{self.vT+1}, s65, v6")
        e(f"s_lshl_b32 s65, s{self.sW}, 16")
        e(f"v_lshl_add_u32 v{self.vST}, v0, 4, s65")
        e(f"s_lshl_b32 s65, s{self.sW}, 13")
        e(f"s_add_u32 s65, s65, {self.EX}")
        e(f"v_lshl_add_u32 v{self.vEXW}, v0, 4, s65")
        e(f"v_xor_b32 v{self.vEXR}, 16384, v{self.vEXW}")
        e("v_and_b32 v1, 3, v0")
        e("v_lshlrev_b32 v2, 13, v1")
        e(f"v_add_u32 v2, {self.EX}, v2")
        e("v_lshlrev_b32 v3, 11, v1")
        e(f"v_add_u32 v3, {self.slot_addr(26, 0)}, v3")
        e("v_and_b32 v1, 4, v0")
        e("v_cmp_eq_u32 vcc, 0, v1")
        e("v_cndmask_b32 v2, v3, v2, vcc")
        e(f"s_lshl_b32 s65, s{self.sW}, 2")
        e(f"v_add_u32 v{self.vFL}, s65, v2")
        for i in range(4):
            e(f"v_mov_b32 v{self.ONE+i}, 0x3f803f80")
        e(f"v_mov_b32 v{self.vMP}, 0xff800000")
        e(f"v_mov_b32 v{self.vMP+1}, 0xff800000")
        e(f"s_lshl_b32 s{self.sRS}, s68, 18")
        e("s_waitcnt lgkmcnt(0)")
        if self.o.get("wsoff"):
            e(f"s_add_u32 s18, s18, {self.o['wsoff'] << 20}")
            e("s_addc_u32 s19, s19, 0")
        e("s_lshl_b32 s66, s61, 20")
        e("s_lshl_b32 s67, s63, 10")
        e("s_add_u32 s66, s66, s67")
        e(f"s_add_u32 s{self.sWS}, s18, s66")
        e(f"s_addc_u32 s{self.sWS+1}, s19, 0")
        e(f"s_mov_b32 s{self.sWS+2}, {(1 << 20) - 15*1024}")
        e(f"s_mov_b32 s{self.sWS+3}, 0x20000")
        self.tail_srds()
        if self.o.get("tlbw") and not getattr(self, "_in_loader", False):
            e("v_mov_b32 v1, 0")
            e(f"buffer_load_dword a46, v1, s[{self.sRD}:{self.sRD+3}], 0 offen nt")
            e(f"buffer_load_dword a47, v1, s[{self.sOUT}:{self.sOUT+3}], 0 offen nt")
            e(f"buffer_load_dword a43, v1, s[{self.sIN}:{self.sIN+3}], 0 offen nt")

    def slot(self, phase, reads, mfma, need):
        return dict(phase=phase, reads=reads, mfma=mfma, need=need, fa=[], fb=[])

    def qproj_slots(self):
        slots = []
        xphase = {}
        XB = self.S[0]
        for phi in range(10):
            first = len(slots)
            xr = []
            for upper, item in enumerate(self.PH[phi]):
                kind, n = item[0], int(item[1:])
                base = self.slot_addr(phi, upper)
                if kind == "x":
                    for s in range(4):
                        for qq in range(2):
                            a = XB + (n % 2) * 32 + 8 * s + 4 * qq
                            xr.append(((phi, "x", n, s, qq),
                                       f"ds_read_b128 {vr(a)}, v{self.vXA+s} offset:{base+qq*4096}"))
                    xphase[n] = phi
                    continue
                for c in range(8):
                    fb = self.fb()
                    va = self.vWA + c + 8 * upper
                    o = base % 65536
                    tg = [(phi, "w", n, c, g) for g in range(2)]
                    reads = [(tg[g], f"ds_read_b64_tr_b16 {ar(fb+2*g, 2)}, v{va} offset:{o+g*4*512}") for g in range(2)]
                    ch, s = n // 4, n % 4
                    ms = []
                    for qq in range(2):
                        d = self.O + 8 * c + 4 * qq
                        a = XB + (ch % 2) * 32 + 8 * s + 4 * qq
                        ms.append(f"{MF} {vr(d)}, {ar(fb)}, {vr(a)}, {'0' if n == 0 else vr(d)}")
                    slots.append(self.slot(phi, reads, ms, tg + [(xphase[ch], "x", ch, s, qq) for qq in range(2)]))
            if xr:
                if phi == 0:
                    slots[first]["reads"] = xr[:2] + slots[first]["reads"]
                    xr = xr[2:]
                    first += 2
                for i, r in enumerate(xr):
                    slots[first + i]["reads"].insert(0, r)
        return slots

    def q_convert(self, ks):
        ops = []
        for qq in range(2):
            q = self.Q + 16 * qq + 4 * ks
            for T in range(2):
                d = self.O + 8 * (2 * ks + T) + 4 * qq
                for i in range(4):
                    ops.append(f"v_mul_f32 v{d+i}, s79, v{d+i}")
                ops.append(f"v_cvt_pk_bf16_f32 v{q+2*T}, v{d}, v{d+1}")
                ops.append(f"v_cvt_pk_bf16_f32 v{q+2*T+1}, v{d+2}, v{d+3}")
        for qq in range(2):
            q = self.Q + 16 * qq + 4 * ks
            ops.append(f"v_permlane16_swap_b32 v{q}, v{q+2}")
            ops.append(f"v_permlane16_swap_b32 v{q+1}, v{q+3}")
        return ops

    def k_slot(self, tau, kt, ks, first_c, base=None):
        phi = 10 + tau // 2
        fb = self.fb()
        tag = (phi, "k", tau, kt, ks)
        o = (self.slot_addr(phi, 0) if base is None else base) + (tau % 2) * 8192 + kt * 4096
        reads = [(tag, f"ds_read_b128 {ar(fb)}, v{self.vKA+ks} offset:{o}")]
        ms = []
        for qq in range(2):
            d = self.S[tau % 2] + 8 * qq + 4 * kt
            C = vr(d) if ks else ("0" if first_c else vr(self.C + 4 * qq))
            ms.append(f"{MF} {vr(d)}, {ar(fb)}, {vr(self.Q+16*qq+4*ks)}, {C}")
        return self.slot(phi, reads, ms, [tag])

    def v_slot(self, tau, dt):
        phi = 11 + tau // 2
        fb = self.fb()
        o = self.slot_addr(phi, 1) % 65536 + (tau % 2) * 8192
        tg = [(phi, "v", tau, dt, g) for g in range(2)]
        reads = [(tg[g], f"ds_read_b64_tr_b16 {ar(fb+2*g, 2)}, v{self.vVA+dt} offset:{o+g*4096}") for g in range(2)]
        ms = []
        for qq in range(2):
            d = self.O + 8 * dt + 4 * qq
            ms.append(f"{MF} {vr(d)}, {ar(fb)}, {vr(self.P[tau % 2]+4*qq)}, {'0' if tau == 0 else vr(d)}")
        return self.slot(phi, reads, ms, tg)

    def sum_mfma(self, tau, qq):
        d = self.LS + 4 * qq
        return f"{MF} {vr(d)}, {vr(self.ONE)}, {vr(self.P[tau % 2]+4*qq)}, {'0' if tau == 0 else vr(d)}"

    def sm_place(self, it, t, sub=False):
        r = self.S[t % 2]
        pw = self.P[t % 2]
        per = 16 // len(it)
        for j in range(16):
            s = it[j // per]
            where = "fa" if j % per == 0 else "fb"
            if sub:
                ps = it[(j - 1) // per] if j else it[0]
                pw_ = ("fa" if (j - 1) % per == 0 and per > 1 else "fb") if j else "fa"
                ps[pw_].append(f"v_sub_f32 v{r+j}, v{r+j}, v{self.vM+j//8}")
            s[where].append(f"v_exp_f32 v{r+j}, v{r+j}")
            if per == 1 and self.o.get("cvtlate", 1):
                if j >= 8:
                    k = j - 8
                    s["fb"].append(f"v_cvt_pk_bf16_f32 v{pw+k}, v{r+2*k}, v{r+2*k+1}")
            elif j >= 2 and j % 2 == 0:
                s["fb"].append(f"v_cvt_pk_bf16_f32 v{pw+j//2-1}, v{r+j-2}, v{r+j-1}")
        if not (per == 1 and self.o.get("cvtlate", 1)):
            it[-1]["fb"].append(f"v_cvt_pk_bf16_f32 v{pw+7}, v{r+14}, v{r+15}")

    def max_ops(self, regs, m, init=None):
        ops = []
        regs = list(regs)
        cur = init
        if cur is None:
            ops.append(f"v_max_f32 v{m}, v{regs[0]}, v{regs[1]}")
            regs = regs[2:]
            cur = m
        while regs:
            if len(regs) >= 2:
                ops.append(f"v_max3_f32 v{m}, v{cur}, v{regs[0]}, v{regs[1]}")
                regs = regs[2:]
            else:
                ops.append(f"v_max_f32 v{m}, v{cur}, v{regs[0]}")
                regs = regs[1:]
            cur = m
        return ops

    def xlane_max(self, m, tmp):
        return [f"v_mov_b32 v{tmp}, v{m}", f"v_permlane32_swap_b32 v{tmp}, v{m}", f"v_max_f32 v{m}, v{m}, v{tmp}",
                f"v_mov_b32 v{tmp}, v{m}", f"v_permlane16_swap_b32 v{tmp}, v{m}", f"v_max_f32 v{m}, v{m}, v{tmp}"]

    def attention_slots(self):
        slots = [self.k_slot(0, kt, ks, True) for ks in range(4) for kt in range(2)]
        s1 = [self.k_slot(1, kt, ks, True) for kt in range(2) for ks in range(4)]
        a, b = [], []
        for qq, lst in ((0, a), (1, b)):
            r = self.S[0] + 8 * qq
            lst += self.max_ops(range(r, r + 8), self.vM + qq, self.vMP + qq)
            lst += self.xlane_max(self.vM + qq, 1 + qq)
            lst += [f"v_sub_f32 v{self.C+4*qq+i}, 0, v{self.vM+qq}" for i in range(4)]
        ops = [x for p in zip(a, b) for x in p]
        self.spread(s1[1:4], ops)
        self.sm_place(s1[4:], 0, True)
        slots += s1
        for t in range(1, 31):
            it = [self.k_slot(t + 1, kt, ks, False) for kt in range(2) for ks in range(4)]
            it += [self.v_slot(t - 1, dt) for dt in range(8)]
            if t == 1:
                self.sm_place(it[4:12], t, True)
            else:
                self.sm_place(it, t)
            sp = self.o.get("sumpos", (3, 7))
            for qq in range(2):
                it[sp[qq]]["mfma"].append(self.sum_mfma(t - 1, qq))
            slots += it
        it = [self.v_slot(30, dt) for dt in range(8)]
        self.sm_place(it, 31)
        for qq in range(2):
            it[qq]["mfma"].append(self.sum_mfma(30, qq))
        slots += it
        it = [self.v_slot(31, dt) for dt in range(8)]
        for qq in range(2):
            it[qq]["mfma"].append(self.sum_mfma(31, qq))
        slots += it
        return slots

    def o_convert(self, f):
        ops = []
        for qq in range(2):
            pk = self.S[0] + 8 * f + 4 * qq
            for T in range(2):
                r = self.O + 8 * (2 * f + T) + 4 * qq
                for i in range(4):
                    ops.append(f"v_mul_f32 v{r+i}, v{1+qq}, v{r+i}")
                ops.append(f"v_cvt_pk_bf16_f32 v{pk+2*T}, v{r}, v{r+1}")
                ops.append(f"v_cvt_pk_bf16_f32 v{pk+2*T+1}, v{r+2}, v{r+3}")

            def wr(pk=pk, qq=qq):
                self.e(f"ds_write_b128 v{self.vEXW}, {vr(pk)} offset:{(2*f+qq)*1024}")
                self.lg.push((27, "ow"))
            ops.append(wr)
        return ops

    def outproj_slots(self):
        slots = []
        for pi in range(8):
            phi = 27 + pi
            blk, a = pi // 2, pi % 2
            for oth in range(2):
                for k in range(2):
                    f = 2 * a + k
                    for c in range(4):
                        fb = self.fb()
                        o = self.slot_addr(phi, 0) + k * 8192
                        tg = [(phi, "o", oth, k, c, g) for g in range(2)]
                        reads = [(tg[g], f"ds_read_b64_tr_b16 {ar(fb+2*g, 2)}, v{self.vOA+4*oth+c} offset:{o+g*4096}")
                                 for g in range(2)]
                        need = list(tg)
                        ms = []
                        for qq in range(2):
                            if oth:
                                bq = self.Q + 8 * f + 4 * qq
                                need.append((27, "of", f, qq))
                            else:
                                bq = self.S[0] + 8 * f + 4 * qq
                            d = self.O + (blk % 2) * 32 + 16 * qq + 4 * c
                            C = "0" if (a == 0 and oth == 0 and k == 0) else vr(d)
                            ms.append(f"{MF} {vr(d)}, {ar(fb)}, {vr(bq)}, {C}")
                        slots.append(self.slot(phi, reads, ms, need))
        return slots

    def store_ops(self, blk):
        ops = [f"s_xor_b32 s{self.sT}, s{self.sRS}, {blk << 18}"]
        for k in range(2):
            for qq in range(2):
                d = self.O + (blk % 2) * 32 + 16 * qq + 8 * k
                pk = self.C + (blk % 2) * 16 + 8 * k + 4 * qq
                for i in range(4):
                    ops.append(f"v_cvt_pk_bf16_f32 v{pk+i}, v{d+2*i}, v{d+2*i+1}")
                if k or qq:
                    ops.append(f"s_add_u32 s{self.sT}, s{self.sT}, 16384")

                def st(pk=pk):
                    self.e(f"buffer_store_dwordx4 {vr(pk)}, v{self.vST}, s[{self.sWS}:{self.sWS+3}], s{self.sT} offen {self.o.get('st_flags', 'sc1').replace('+', ' ')}")
                    self.vm.push(blk)
                ops.append(st)
        return ops

    def ack_ops(self, blk):
        def f():
            self.vm.need(lambda t: t <= blk)
            self.e(f"ds_add_u32 v3, v4 offset:{4*blk}")
            self.lg.push((99, "ack"))
        return [f]

    def compute(self):
        e = self.e
        self.fbi = 0
        self.setup()
        if self.stamps:
            e(f"v_mov_b32 v{self.vS1}, 0")
            e(f"v_mov_b32 v{self.vS2}, 0")
            e(f"v_writelane_b32 v{self.vS1}, s70, 0")
        self.stamp("setup")
        sc = math.log2(math.e) / math.sqrt(128.0)
        e(f"s_mov_b32 s79, {f32(sc)}")
        qs = self.qproj_slots()
        at = self.attention_slots()
        os_ = self.outproj_slots()
        self.spread(qs[-4:-2], self.q_convert(0))
        self.spread(qs[-2:], self.q_convert(1))
        self.spread(at[0:2], self.q_convert(2))
        self.spread(at[2:4], self.q_convert(3))
        adr = [f"v_xor_b32 v{self.vVA+d}, {d*32}, v{self.vT}" for d in range(8)]
        adr += [f"v_xor_b32 v{self.vOA+4*o+c}, {o*65536+c*32}, v{self.vT+1}" for o in range(2) for c in range(4)]
        self.spread(at[4:8], adr)

        def re_label(slots, g, nxt):
            self.re_reads = [r for s in slots[g:nxt] for r in s["reads"]]
            assert all(s["phase"] == 10 for s in slots[g:nxt])
            e("L_re_compute:")
        at[8]["label"] = re_label
        L0, L1 = self.LS, self.LS + 4

        def vote():
            e(f"v_add_f32 v4, v{L0}, v{L1}")
            e(f"v_cmp_nlt_f32 vcc, v4, v5")
            e(f"v_rcp_f32 v1, v{L0}")
            e(f"v_rcp_f32 v2, v{L1}")
            e("s_cmp_lg_u64 vcc, 0")
            e(f"s_cselect_b32 s52, s{self.sMODE}, 0")
            e("v_mov_b32 v3, s52")
            e(f"ds_write_b32 v{self.vFL}, v3")
            self.lg.push((26, "vote"))
        at[-9]["fb"].append(f"v_mov_b32 v5, {f32(self.o['thresh'])}")
        at[-5]["fb"].append(vote)

        def after27():
            e(f"v_and_b32 v3, {~1023 & 0xffffffff}, v{self.vEXW}")
            e("ds_read_b128 v[4:7], v3")
            self.lg.push((27, "vr"))
        save = self.o["BOFF"]
        e("s_waitcnt vmcnt(0)")
        self.barrier(0)
        self.tail_boff = 4
        self.run_slots_main(qs + at, after27)
        self.stamp("attn", 1)
        for s in os_[:6]:
            for tag, text in s["reads"]:
                e(text)
                self.lg.push(tag)
            s["issued"] = -8
        self.lg.need(lambda t: t == (27, "vr"))
        e("v_or3_b32 v4, v4, v5, v6")
        e("v_or_b32 v4, v4, v7")
        e("v_readfirstlane_b32 s52, v4")
        e("s_cmp_lg_u32 s52, 0")
        e("s_cbranch_scc1 L_safe_compute")
        for op in self.o_convert(0) + self.o_convert(1):
            self.emit_fill(op)
        self.spread(os_[0:4], self.o_convert(2) + self.o_convert(3))

        def of_reads():
            self.plain_barrier(lambda t: t == (27, "ow"))
            for f in range(4):
                for qq in range(2):
                    e(f"ds_read_b128 {vr(self.Q+8*f+4*qq)}, v{self.vEXR} offset:{(2*f+qq)*1024}")
                    self.lg.push((27, "of", f, qq))
        os_[5]["fb"].append(of_reads)
        os_[6]["fb"] += [f"v_mov_b32 v3, {self.EX}", "v_mov_b32 v4, 0", "v_cmp_eq_u32 vcc, 0, v0",
                         "v_cndmask_b32 v4, 0, 1, vcc"]
        AD = self.o["ackdist"]
        for blk in range(3):
            self.spread(os_[32 * (blk + 1) + 2:32 * (blk + 1) + 8], self.store_ops(blk))
            j = 32 * (blk + 1) + 8 + AD
            if j < len(os_):
                os_[j]["fb"] += self.ack_ops(blk)
        self.run_slots(os_, 27)
        for op in self.store_ops(3):
            self.emit_fill(op)
        self.stamp("outproj", 1)
        for blk in range(4):
            if 32 * (blk + 1) + 8 + AD >= len(os_):
                for op in self.ack_ops(blk):
                    self.emit_fill(op)
        self.stamp("acked", 1)
        self.poll_flags("L_poll_c", "3")
        self.stamp("polled", 1)
        e("s_xor_b32 s65, s68, 3")
        e("s_lshl_b32 s66, s65, 18")
        e("s_lshl_b32 s67, s63, 14")
        e("s_add_u32 s66, s66, s67")
        e(f"s_lshl_b32 s67, s{self.sW}, 8")
        e("s_add_u32 s66, s66, s67")
        e("v_lshlrev_b32 v1, 2, v0")
        for i in range(16):
            if i % 4 == 0 and i:
                e("s_add_u32 s66, s66, 4096")
            e(f"buffer_load_dword v{48+i}, v1, s[{self.sRD}:{self.sRD+3}], s66 offen offset:{(i%4)*1024} sc1")
        e("v_lshrrev_b32 v2, 2, v0")
        e("v_lshlrev_b32 v2, 10, v2")
        e("v_bfe_u32 v3, v0, 1, 1")
        e("v_lshl_add_u32 v2, v3, 5, v2")
        e("v_and_b32 v3, 1, v0")
        e("v_lshl_add_u32 v2, v3, 2, v2")
        self.unit_offset("s65", "s67")
        e(f"s_lshl_b32 s52, s{self.sW}, 3")
        e("s_add_u32 s67, s67, s52")
        e("s_mov_b32 s66, 0xffff0000")
        for i in range(16):
            e(f"s_waitcnt vmcnt({15-i})")
            if i == 0:
                e("v_lshlrev_b32 v4, 16, v48")
                e("v_and_b32 v5, s66, v48")
            else:
                e(f"v_lshlrev_b32 v6, 16, v{48+i}")
                e(f"v_and_b32 v7, s66, v{48+i}")
                e("v_add_f32 v4, v4, v6")
                e("v_add_f32 v5, v5, v7")
        e("v_cvt_pk_bf16_f32 v4, v4, v5")
        e(f"buffer_store_dword v4, v2, s[{self.sOUT}:{self.sOUT+3}], s67 offen")
        self.stamp("reduced", 1)
        if self.stamps:
            e("s_waitcnt vmcnt(0)")
            self.stamp("drain", 1)
            e("s_add_u32 s44, s18, 0x2000000")
            e("s_addc_u32 s45, s19, 0")
            e("s_mov_b32 s46, 0x4000000")
            e("s_mov_b32 s47, 0x20000")
            e("s_mul_i32 s65, s2, 4")
            e(f"s_add_u32 s65, s65, s{self.sW}")
            e("s_mul_i32 s65, s65, 512")
            e("v_lshlrev_b32 v1, 2, v0")
            e("s_getreg_b32 s66, hwreg(HW_REG_XCC_ID)")
            e(f"v_writelane_b32 v{self.vS1}, s66, 63")
            e(f"buffer_store_dword v{self.vS1}, v1, s[44:47], s65 offen")
            e(f"buffer_store_dword v{self.vS2}, v1, s[44:47], s65 offen offset:256")
        e("L_end:")
        e("s_endpgm")
        e("L_safe_compute:")
        e("s_waitcnt lgkmcnt(0)")
        e("s_barrier")
        e(f"s_mov_b32 s{self.sMODE}, 0")
        e("s_mov_b32 s67, 0")
        e("L_safe_c_loop:")
        e("s_barrier")
        self.fbi = 0
        for tau in range(2):
            ks_ = [self.k_slot(tau, kt, ks, True, base=0) for kt in range(2) for ks in range(4)]
            for s in ks_:
                e(s["reads"][0][1])
            e("s_waitcnt lgkmcnt(0)")
            for s in ks_:
                e(s["mfma"][0])
                e(s["mfma"][1])
            e("s_nop 7")
            self.fbi = 0
        e("s_barrier")
        for qq in range(2):
            regs = [self.S[tau] + 8 * qq + i for tau in range(2) for i in range(8)]
            for op in self.max_ops(regs, self.vMP + qq, self.vMP + qq):
                e(op)
        e("s_add_u32 s67, s67, 1")
        e("s_cmp_lt_u32 s67, 16")
        e("s_cbranch_scc1 L_safe_c_loop")
        e("s_barrier")
        ks_ = [self.k_slot(0, kt, ks, True) for kt in range(2) for ks in range(4)]
        for s in ks_:
            e(s["reads"][0][1])
        e("s_waitcnt lgkmcnt(0)")
        for s in ks_:
            e(s["mfma"][0])
            e(s["mfma"][1])
        e("s_nop 7")
        for tag, text in self.re_reads:
            e(text)
        e("s_waitcnt lgkmcnt(0)")
        e("s_branch L_re_compute")

    def run_slots_main(self, slots, after27):
        n = len(slots)
        extra = self.slot(27, [], [], [])
        save = self.o["BOFF"]
        self._tail_gap = n - 4
        self.run_slots_tail(slots, after27)

    def run_slots_tail(self, slots, after27):
        def bar():
            assert all("issued" in x for x in slots)
            self.barrier(27)
            after27()
        slots[self._tail_gap]["fb"].append(bar)
        self.run_slots(slots, 0)

    def main_kernel(self):
        self.events = []
        self.prologue()
        self.compute()
        self.loader()
        self.e("L_code_end:")
        return hazard_pass(self.L)


def kd(name, vgpr, accum, sgpr=102):
    return f""".amdhsa_kernel {name}
  .amdhsa_next_free_vgpr {vgpr}
  .amdhsa_next_free_sgpr {sgpr}
  .amdhsa_accum_offset {accum}
  .amdhsa_group_segment_fixed_size 0
  .amdhsa_kernarg_size 64
  .amdhsa_user_sgpr_count 2
  .amdhsa_user_sgpr_kernarg_segment_ptr 1
  .amdhsa_system_sgpr_workgroup_id_x 1
.end_amdhsa_kernel
"""


def build(stamps=0, opts=None):
    g = Gen(stamps, opts)
    body, added = g.main_kernel()
    txt = HEADER
    txt += "; @launch grid=(256,1,1) block=(512,1,1) lds=163840\n"
    txt += '.amdgcn_target "amdgcn-amd-amdhsa--gfx950"\n.text\n'
    txt += f".globl {KN}\n.p2align 8\n.type {KN},@function\n{KN}:\n" + "\n".join(body) + "\n"
    txt += '.section .rodata,"a"\n.p2align 6\n' + kd(KN, 256, g.ACC)
    txt += "; stamps: " + " ".join(g.stamp_names) + "\n"
    return txt, added


if __name__ == "__main__":
    import argparse
    ap = argparse.ArgumentParser()
    ap.add_argument("out")
    ap.add_argument("--stamps", type=int, default=0)
    ap.add_argument("--opt", action="append", default=[])
    a = ap.parse_args()
    opts = {}
    for o in a.opt:
        k, v = o.split("=")
        try:
            opts[k] = int(v)
        except ValueError:
            try:
                opts[k] = float(v)
            except ValueError:
                opts[k] = v
    txt, added = build(a.stamps, opts)
    open(a.out, "w").write(txt)
    print("wrote", a.out, "lines", txt.count("\n"), "nop states added", added)
```

```python
import math
import struct
from asmlib import hazard_pass, Queue

KN = "standalone__gqa_block_cached__near_ridge_kernel"
HEADER = """; Kernarg layout for this problem (64 bytes, ptrs only, base s[0:1]):
"""


def f32(x):
    return "0x%08x" % struct.unpack("<I", struct.pack("<f", x))[0]


MF = "v_mfma_f32_16x16x32_bf16"


def vr(a, n=4):
    return f"v[{a}:{a+n-1}]"


def ar(a, n=4):
    return f"a[{a}:{a+n-1}]"


class Gen:
    def __init__(self, stamps=0, opts=None):
        self.stamps = stamps
        self.o = dict(DMAX=10, BOFF=6, RPG=2, WG=4, kv_flags="nt", w_flags="nt", o_flags="", x_flags="", lead=0, prio=1, d2=3,
                      thresh=2.0 ** 60, ackdist=60)
        self.o.update(opts or {})
        self.L = []
        self.lg = Queue("lgkmcnt", 15, self.e)
        self.vm = Queue("vmcnt", 63, self.e)
        self.nstamp = 0
        self.stamp_names = ["start"]
        self.vKA, self.vXA = 8, 12
        self.vWA = 16
        self.vVA, self.vOA = 16, 24
        self.vST, self.vEXW, self.vEXR, self.vFL = 32, 33, 34, 35
        self.vM, self.vMP = 36, 38
        self.vS1, self.vS2 = 40, 41
        self.vT = 42
        self.ONE = 44
        b = 48
        self.S = [b, b + 16]
        self.C = b + 32
        self.P = [b + 40, b + 48]
        self.LS = b + 56
        self.O = b + 64
        self.Q = b + 128
        self.ACC = b + 160
        self.NFB = 12
        self.sX, self.sWQ, self.sK, self.sV, self.sWO, self.sWS = 20, 24, 28, 32, 36, 40
        self.sDBG, self.sOUT, self.sRD, self.sIN = 80, 84, 88, 92
        self.sW = 3
        self.sT = 53
        self.sRW, self.sRX, self.sRO, self.sRS = 56, 57, 58, 59
        self.sMODE = 78
        self.EX = 131072
        self.PH = self.phases()
        self.NPH = len(self.PH)

    def e(self, s):
        self.L.append(s if s.startswith("    ") or s.endswith(":") else "    " + s)

    def slot_addr(self, phi, upper):
        return (65536 if upper else 0) + (phi % 4) * 16384

    def stamp(self, name="", level=1):
        ec = self.o.get("echo")
        if ec:
            a, b = ec.split("-")
            if name in (a, b):
                self.lg.drain()
                self.e("s_memrealtime s[72:73]")
                self.e("s_waitcnt lgkmcnt(0)")
                self.e(f"s_mov_b32 s{100 if name == a else 101}, s72")
            if name == "reduced":
                if a == "start":
                    self.e("s_mov_b32 s100, s70")
                self.e("s_sub_u32 s100, s101, s100")
                self.e("s_memrealtime s[72:73]")
                self.e("s_waitcnt lgkmcnt(0)")
                self.e("s_mov_b32 s101, s72")
                self.e("L_echo:")
                self.e("s_memrealtime s[72:73]")
                self.e("s_waitcnt lgkmcnt(0)")
                self.e("s_sub_u32 s66, s72, s101")
                self.e("s_cmp_lt_u32 s66, s100")
                self.e("s_cbranch_scc1 L_echo")
            return
        if not self.stamps or level > self.stamps:
            return
        i = self.nstamp
        self.nstamp += 1
        assert i < 61
        self.stamp_names.append(name)
        self.lg.drain()
        self.e("s_memrealtime s[72:73]")
        self.e("s_memtime s[74:75]")
        self.e("s_waitcnt lgkmcnt(0)")
        self.e(f"v_writelane_b32 v{self.vS1}, s72, {i+1}")
        self.e(f"v_writelane_b32 v{self.vS2}, s74, {i+1}")

    def phases(self):
        ph = [("x0", "w0"), ("x1", "w1"), ("w2", "w3"), ("w4", "w5"), ("x2", "w6"), ("w7", "w8"),
              ("w9", "w10"), ("x3", "w11"), ("w12", "w13"), ("w14", "w15"), ("K0", None)]
        for j in range(1, 16):
            ph.append((f"K{j}", f"V{j-1}"))
        ph.append((None, "V15"))
        for blk in range(4):
            for a in range(2):
                ph.append((f"o{4*blk+a}", f"o{4*blk+a+2}"))
        return ph

    def prologue(self):
        e = self.e
        e("s_cmp_ge_u32 s2, 256")
        e("s_cbranch_scc1 L_end")
        if self.stamps or self.o.get("echo"):
            e("s_memrealtime s[70:71]")
        e("s_load_dwordx16 s[4:19], s[0:1], 0")
        e("v_lshrrev_b32 v1, 6, v0")
        e("v_and_b32 v0, 63, v0")
        e(f"v_readfirstlane_b32 s{self.sW}, v1")
        e("s_and_b32 s60, s2, 7")
        e("s_lshr_b32 s61, s2, 4")
        e("s_bfe_u32 s62, s2, 0x10003")
        e("s_lshl_b32 s63, s60, 1")
        e("s_add_u32 s63, s63, s62")
        e("s_lshl_b32 s64, s61, 3")
        e("s_add_u32 s64, s64, s60")
        e("s_and_b32 s68, s61, 3")
        e("s_lshr_b32 s69, s61, 2")
        e("s_and_b32 s76, s60, 3")
        e("s_lshl_b32 s77, s62, 1")
        e("s_xor_b32 s76, s76, s77")
        e("s_xor_b32 s77, s76, s69")
        e("s_lshl_b32 s76, s76, 2")
        e("s_xor_b32 s76, s76, s61")
        e(f"s_mov_b32 s{self.sMODE}, {0 if self.o.get('dbg_nodma') else 1}")
        e(f"s_cmp_ge_u32 s{self.sW}, 4")
        e("s_cbranch_scc1 L_loader")

    def srd(self, s, lo, off_s, shift, nrec):
        e = self.e
        if off_s is None:
            e(f"s_mov_b32 s{s}, s{lo}")
            e(f"s_mov_b32 s{s+1}, s{lo+1}")
        else:
            e(f"s_lshl_b32 s66, s{off_s}, {shift}")
            e(f"s_add_u32 s{s}, s{lo}, s66")
            e(f"s_addc_u32 s{s+1}, s{lo+1}, 0")
        e(f"s_mov_b32 s{s+2}, {nrec}")
        e(f"s_mov_b32 s{s+3}, 0x20000")

    def tail_srds(self):
        self.srd(self.sDBG, 16, None, 0, 256)
        self.srd(self.sRD, 18, 61, 20, 1 << 20)
        self.srd(self.sOUT, 14, 61, 16, 65536)
        e = self.e
        e("s_lshl_b32 s66, s61, 12")
        e("s_add_u32 s66, s66, 0x1000000")
        e(f"s_add_u32 s{self.sIN}, s18, s66")
        e(f"s_addc_u32 s{self.sIN+1}, s19, 0")
        e(f"s_mov_b32 s{self.sIN+2}, 4096")
        e(f"s_mov_b32 s{self.sIN+3}, 0x20000")

    def dma_half(self, phi, upper, hsel, base=None, so_reg=None):
        item = self.PH[phi][upper]
        if item is None:
            return
        if self.o.get("dbg_nodma") and 16 <= phi <= 26:
            return
        e = self.e
        kind, n = item[0], int(item[1:])
        if base is None:
            base = self.slot_addr(phi, upper)
        if kind == "x":
            srd, vo, so, rs, hs, fl = self.sX, [8, 9], n * 256, self.sRX, 32768, "x_flags"
        elif kind == "w":
            srd, vo, so, rs, hs, fl = self.sWQ, [10, 11], n * 32 * 8192, self.sRW, 16 * 8192, "w_flags"
        elif kind == "K":
            srd, vo, so, rs, hs, fl = self.sK, [12, 13], n * 16384, None, 8192, "kv_flags"
        elif kind == "V":
            srd, vo, so, rs, hs, fl = self.sV, [14, 15], n * 16384, None, 8192, "kv_flags"
        else:
            srd, vo, so, rs, hs, fl = self.sWO, [16, 17], (n % 4) * 65536 + (n // 4) * 256, self.sRO, 32768, "o_flags"
        fl = self.o[fl].replace("+", " ")
        st = self.sT
        if rs is None:
            e(f"s_add_u32 m0, s{46+hsel}, {base}")
            e(f"s_add_u32 s{st}, s{44+hsel}, {so if so_reg is None else so_reg}")
        else:
            e(f"s_add_u32 m0, s48, {base+hsel*8192}")
            e(f"s_xor_b32 s{st}, s{rs}, {so+hsel*hs}")
        e(f"buffer_load_dwordx4 v{vo[0]}, s[{srd}:{srd+3}], s{st} offen {fl} lds")
        e(f"buffer_load_dwordx4 v{vo[1]}, s[{srd}:{srd+3}], s{st} offen offset:1024 {fl} lds")
        self.vm.push(phi)
        self.vm.push(phi)

    def is_kv(self, phi):
        return 10 <= phi <= 26

    def dma_phase(self, phi, which=(0, 1)):
        if phi >= self.NPH:
            return
        for upper in range(2):
            for hsel in which:
                self.dma_half(phi, upper, hsel)

    def poll_flags(self, lab, row):
        e = self.e
        e("s_lshl_b32 s65, s63, 8")
        e(f"s_lshl_b32 s66, {row}, 6")
        e("s_add_u32 s65, s65, s66")
        e("v_and_b32 v2, 15, v0")
        e("v_lshlrev_b32 v2, 2, v2")
        e("s_mov_b32 s67, 0")
        e(f"{lab}:")
        e(f"buffer_load_dword v4, v2, s[{self.sIN}:{self.sIN+3}], s65 offen sc0 sc1")
        e("s_add_u32 s67, s67, 1")
        e("s_cmp_gt_u32 s67, 0x40000")
        e(f"s_cbranch_scc1 {lab}_done")
        e("s_waitcnt vmcnt(0)")
        e("v_cmp_eq_u32 vcc, 0, v4")
        e("s_nop 4")
        e(f"s_cbranch_vccnz {lab}")
        e(f"{lab}_done:")
        e("s_waitcnt vmcnt(0)")

    def loader(self):
        e = self.e
        self.vm.q = []
        e("L_loader:")
        e(f"s_sub_u32 s49, s{self.sW}, 4")
        e("s_lshl_b32 s48, s49, 11")
        e(f"s_lshl_b32 s{self.sRW}, s76, 18")
        e(f"s_lshl_b32 s{self.sRX}, s77, 8")
        e("v_lshrrev_b32 v2, 4, v0")
        e("v_and_b32 v3, 15, v0")
        e("v_lshrrev_b32 v4, 5, v0")
        e("v_and_b32 v5, 31, v0")
        e("s_and_b32 s65, s49, 1")
        e("s_lshl_b32 s65, s65, 3")
        e("v_or_b32 v6, s65, v2")
        e("v_xor_b32 v6, v6, v3")
        e("v_lshlrev_b32 v6, 4, v6")
        e("s_lshl_b32 s65, s49, 3")
        e("v_add_u32 v7, s65, v2")
        e("v_lshl_add_u32 v8, v7, 10, v6")
        e("v_xor_b32 v9, 64, v8")
        e("v_add_u32 v9, 3072, v9")
        e("s_lshl_b32 s65, s49, 2")
        e("v_add_u32 v18, s65, v4")
        e("s_lshr_b32 s65, s49, 1")
        e("s_lshl_b32 s65, s65, 3")
        e("v_lshl_or_b32 v19, v4, 1, s65")
        e("v_xor_b32 v19, v19, v5")
        e("v_lshlrev_b32 v19, 4, v19")
        e("v_lshl_add_u32 v10, v18, 13, v19")
        e("v_xor_b32 v11, 64, v10")
        e(f"v_add_u32 v11, {16384-1024}, v11")
        e("s_waitcnt lgkmcnt(0)")
        if self.o.get("wsoff"):
            e(f"s_add_u32 s18, s18, {self.o['wsoff'] << 20}")
            e("s_addc_u32 s19, s19, 0")
        self.srd(self.sX, 4, 61, 16, 65536)
        self.srd(self.sWQ, 10, 63, 9, 511 * 8192 + 512)
        self.dma_phase(0)
        self.srd(self.sK, 6, 64, 18, 262144)
        self.srd(self.sV, 8, 64, 18, 262144)
        self.srd(self.sWO, 12, 63, 18, 262144)
        e("v_lshl_add_u32 v12, v7, 8, v6")
        e("v_xor_b32 v13, 64, v12")
        e("v_lshlrev_b32 v18, 1, v2")
        e("v_xor_b32 v18, v18, v3")
        e("v_lshlrev_b32 v18, 4, v18")
        e("v_lshl_add_u32 v14, v7, 8, v18")
        e("v_xor_b32 v15, 128, v14")
        e("v_lshl_add_u32 v16, v7, 10, v18")
        e("v_xor_b32 v17, 128, v16")
        e("v_add_u32 v17, 3072, v17")
        e("s_lshl_b32 s65, s69, 16")
        e("s_lshl_b32 s66, s68, 8")
        e(f"s_or_b32 s{self.sRO}, s65, s66")
        e("s_lshl_b32 s44, s62, 13")
        e("s_xor_b32 s45, s44, 8192")
        e("s_add_u32 s46, s44, s48")
        e("s_add_u32 s47, s45, s48")
        self.dma_phase(1)
        self.tail_srds()
        e(f"s_add_u32 s65, s48, {self.slot_addr(26, 0)}")
        e("v_mov_b32 v20, s65")
        e(f"v_mov_b32 v21, {self.EX}")
        for i in range(4):
            e(f"v_mov_b32 v{24+i}, 0")
        e("v_lshlrev_b32 v22, 2, v0")
        e("v_mov_b32 v23, 1")
        e("s_mul_i32 s50, s2, 10")
        e("s_lshr_b32 s50, s50, 8")
        e("s_add_u32 s50, s50, 14")
        e("s_cmp_eq_u32 s49, 3")
        e("s_cselect_b32 s50, s50, 0")
        lead = self.o["lead"]
        d2 = self.o["d2"]
        units = []
        done = []
        for p in range(2, self.NPH):
            for upper in range(2):
                for hsel in range(2):
                    if self.PH[p][upper] is not None:
                        key = p + (1 if (lead and self.is_kv(p) and hsel) else 0)
                        units.append((key, 0 if (lead and self.is_kv(p) and hsel) else 1, p, upper, hsel))
        units = [u[2:] for u in sorted(units)]
        for ev in self.events:
            if ev[0] != "B":
                e("s_barrier")
                continue
            phi = ev[1]
            assert all(u[0] > phi for u in units)
            self.vm.need(lambda t: t <= phi)
            if not (self.o.get("dbg_nobar") and 13 <= phi <= 25):
                e("s_barrier")
            if phi == 27:
                e("ds_read_b128 v[4:7], v20")
                e("s_waitcnt lgkmcnt(0)")
                e("v_or3_b32 v4, v4, v5, v6")
                e("v_or_b32 v4, v4, v7")
                e("v_readfirstlane_b32 s65, v4")
                e("s_cmp_lg_u32 s65, 0")
                e("s_cbranch_scc1 L_safe_loader")
            if phi == 28:
                e("ds_write_b128 v21, v[24:27]")
                e("s_waitcnt lgkmcnt(0)")
            if phi == self.o.get("clrchk", 27):
                e("s_cmp_lg_u32 s49, 3")
                e("s_cbranch_scc1 L_fm_clr_done")
                e("s_lshl_b32 s65, s61, 4")
                e("v_and_b32 v2, 3, v0")
                e("v_lshlrev_b32 v2, 2, v2")
                e("s_mov_b32 s67, 0")
                e("L_fm_clr:")
                e(f"buffer_load_dword v4, v2, s[{self.sDBG}:{self.sDBG+3}], s65 offen sc0 sc1")
                e("s_add_u32 s67, s67, 1")
                e("s_cmp_gt_u32 s67, 0x40000")
                e("s_cbranch_scc1 L_fm_clr_done")
                e("s_waitcnt vmcnt(0)")
                e("v_cmp_ne_u32 vcc, 0x01010101, v4")
                e("s_nop 4")
                e("s_cbranch_vccnz L_fm_clr")
                e("L_fm_clr_done:")
            dist = 2 if phi < d2 else 3
            quota = 99
            if 12 <= phi <= 24 and self.o.get("lag", 0):
                quota = 3 if (phi - 12) % self.o["lag"] == 0 else 4
            issued = 0
            while units:
                p, upper, hsel = units[0]
                lagged = lead and self.is_kv(p) and hsel
                may = p <= phi + dist - (1 if lagged and dist == 3 else 0)
                must = p <= phi + (1 if (lagged or not self.is_kv(p)) else 2)
                if not (must or (may and issued < quota)):
                    break
                units.pop(0)
                self.dma_half(p, upper, hsel)
                done.append((p, upper, hsel))
                issued += 1
            if phi == 10:
                e("s_cmp_lg_u32 s49, 3")
                e("s_cbranch_scc1 L_noclear")
                e("s_lshl_b32 s65, s63, 8")
                e(f"buffer_store_dword v24, v22, s[{self.sIN}:{self.sIN+3}], s65 offen sc0 sc1")
                e("L_noclear:")
                self.re_units = [u for u in done if u[0] >= 10]
                e("L_re_loader:")
            if 14 <= phi <= 23:
                e(f"s_cmp_lg_u32 s50, {phi}")
                e(f"s_cbranch_scc1 L_noann{phi}")
                e("s_lshl_b32 s65, s61, 4")
                e("s_add_u32 s65, s65, s63")
                e("s_mov_b64 exec, 1")
                e(f"buffer_store_byte v23, v24, s[{self.sDBG}:{self.sDBG+3}], s65 offen sc0 sc1")
                e("s_mov_b64 exec, -1")
                e(f"L_noann{phi}:")
        e("s_cmp_eq_u32 s49, 3")
        e("s_cbranch_scc1 L_flagman")
        self.poll_flags("L_poll_l", "s49")
        e("s_xor_b32 s65, s49, s68")
        e("s_lshl_b32 s66, s65, 18")
        e("s_lshl_b32 s67, s63, 14")
        e("s_add_u32 s66, s66, s67")
        e("v_lshlrev_b32 v1, 4, v0")
        for i in range(16):
            if i % 4 == 0 and i:
                e("s_add_u32 s66, s66, 4096")
            e(f"buffer_load_dwordx4 {vr(32+4*i)}, v1, s[{self.sRD}:{self.sRD+3}], s66 offen offset:{(i%4)*1024} sc1")
        e("v_and_b32 v2, 15, v0")
        e("v_lshlrev_b32 v2, 10, v2")
        e("v_bfe_u32 v3, v0, 4, 1")
        e("v_lshl_add_u32 v2, v3, 5, v2")
        e("v_bfe_u32 v3, v0, 5, 1")
        e("v_lshl_add_u32 v2, v3, 4, v2")
        self.unit_offset("s65", "s67")
        e("s_mov_b32 s66, 0xffff0000")
        for i in range(16):
            e(f"s_waitcnt vmcnt({15-i})")
            for k in range(4):
                r = 32 + 4 * i + k
                if i == 0:
                    e(f"v_lshlrev_b32 v{8+2*k}, 16, v{r}")
                    e(f"v_and_b32 v{9+2*k}, s66, v{r}")
                else:
                    e(f"v_lshlrev_b32 v16, 16, v{r}")
                    e(f"v_and_b32 v17, s66, v{r}")
                    e(f"v_add_f32 v{8+2*k}, v{8+2*k}, v16")
                    e(f"v_add_f32 v{9+2*k}, v{9+2*k}, v17")
        for k in range(4):
            e(f"v_cvt_pk_bf16_f32 v{16+k}, v{8+2*k}, v{9+2*k}")
        e("v_permlane16_swap_b32 v16, v18")
        e("v_permlane16_swap_b32 v17, v19")
        e(f"buffer_store_dwordx4 v[16:19], v2, s[{self.sOUT}:{self.sOUT+3}], s67 offen")
        e("s_endpgm")
        e("L_flagman:")
        e("s_lshl_b32 s65, s63, 2")
        e("v_lshlrev_b32 v2, 8, v0")
        e("s_mov_b32 s66, 0")
        e("s_mov_b32 s67, 0")
        e("s_mov_b64 exec, 0xffff")
        e("L_fm_loop:")
        e("ds_read_b128 v[4:7], v21")
        e("s_add_u32 s67, s67, 1")
        e("s_waitcnt lgkmcnt(0)")
        e("v_lshrrev_b32 v4, 2, v4")
        e("v_lshrrev_b32 v5, 2, v5")
        e("v_lshrrev_b32 v6, 2, v6")
        e("v_lshrrev_b32 v7, 2, v7")
        e("v_add3_u32 v4, v4, v5, v6")
        e("v_add_u32 v4, v4, v7")
        e("v_readfirstlane_b32 s52, v4")
        e("s_cmp_gt_u32 s67, 0x400000")
        e("s_cbranch_scc1 L_end")
        e("L_fm_pub:")
        e("s_cmp_le_u32 s52, s66")
        e("s_cbranch_scc1 L_fm_loop")
        e(f"buffer_store_dword v23, v2, s[{self.sIN}:{self.sIN+3}], s65 offen sc0 sc1")
        e("s_add_u32 s65, s65, 64")
        e("s_add_u32 s66, s66, 1")
        e("s_cmp_lt_u32 s66, 4")
        e("s_cbranch_scc1 L_fm_pub")
        e("s_endpgm")
        e("L_safe_loader:")
        e("s_waitcnt vmcnt(0)")
        e("s_barrier")
        e("s_mov_b32 s67, 0")
        e("L_safe_l_loop:")
        self.dma_half(10, 0, 0, base=0, so_reg="s67")
        self.dma_half(10, 0, 1, base=0, so_reg="s67")
        e("s_waitcnt vmcnt(0)")
        e("s_barrier")
        e("s_add_u32 s67, s67, 16384")
        e("s_barrier")
        e("s_cmp_lt_u32 s67, 262144")
        e("s_cbranch_scc1 L_safe_l_loop")
        for u in self.re_units:
            self.dma_half(*u)
        e("s_waitcnt vmcnt(0)")
        e("s_barrier")
        e("s_branch L_re_loader")

    def unit_offset(self, sblk, sdst):
        e = self.e
        e(f"s_lshl_b32 {sdst}, {sblk}, 8")
        e("s_bfe_u32 s52, s63, 0x10003")
        e("s_lshl_b32 s52, s52, 7")
        e(f"s_add_u32 {sdst}, {sdst}, s52")
        e("s_bfe_u32 s52, s63, 0x10001")
        e("s_lshl_b32 s52, s52, 6")
        e(f"s_add_u32 {sdst}, {sdst}, s52")
        e("s_bfe_u32 s52, s63, 0x10002")
        e("s_lshl_b32 s52, s52, 15")
        e(f"s_add_u32 {sdst}, {sdst}, s52")
        e("s_and_b32 s52, s63, 1")
        e("s_lshl_b32 s52, s52, 14")
        e(f"s_add_u32 {sdst}, {sdst}, s52")

    def barrier(self, phi):
        if self.o.get("dbg_nobar") and 13 <= phi <= 25:
            self.events.append(("B", phi))
            self.stamp(f"B{phi}", 1 if phi in (0, 5, 10, 12, 19, 26, 28, 31) else 2)
            return
        self.lg.need(lambda t: t[0] <= phi - 1)
        self.e("s_barrier")
        self.events.append(("B", phi))
        self.stamp(f"B{phi}", 1 if phi in (0, 5, 10, 12, 19, 26, 28, 31) else 2)

    def plain_barrier(self, pred):
        self.lg.need(pred)
        self.e("s_barrier")
        self.events.append(("P",))

    def run_slots(self, slots, open_phase, tail_barrier=None, first_burst=5, after_bar={}):
        n = len(slots)
        DMAX, BOFF, RPG, WG = self.o["DMAX"], self.o["BOFF"], self.o["RPG"], self.o["WG"]
        bar_at = {}
        cur = open_phase
        prev_first = 0
        for j, s in enumerate(slots):
            if s["phase"] > cur:
                g = max(j - BOFF, prev_first)
                bar_at.setdefault(g, []).append(s["phase"])
                cur = s["phase"]
                prev_first = j
        if tail_barrier is not None:
            bar_at.setdefault(max(n - BOFF, prev_first), []).append(tail_barrier)
        opened = open_phase
        nxt = 0
        while nxt < n and "issued" in slots[nxt]:
            nxt += 1

        def issue_one():
            nonlocal nxt
            for tag, text in slots[nxt]["reads"]:
                self.e(text)
                self.lg.push(tag)
            slots[nxt]["issued"] = cur_g
            nxt += 1

        def issue_reads(g, limit):
            k = 0
            while nxt < n and k < limit and nxt - g <= DMAX and slots[nxt]["phase"] <= opened:
                issue_one()
                k += 1
        cur_g = -1
        issue_reads(-1, first_burst - nxt)
        for g, s in enumerate(slots):
            cur_g = g
            assert nxt > g, (g, nxt)
            if "label" in s:
                s["label"](slots, g, nxt)
            tags = list(s["need"])
            if any(t in tags for t in self.lg.q):
                for k in range(1, WG):
                    if g + k < n and g + k < nxt and slots[g + k]["issued"] <= g - 3:
                        tags += slots[g + k]["need"]
                    else:
                        break
                self.lg.need(lambda t: t in tags)
            ms = s["mfma"]
            self.e(ms[0])
            for f in s["fa"]:
                self.emit_fill(f)
            self.e(ms[1])
            issue_reads(g, RPG if nxt - g < DMAX - 2 else 1)
            for f in s["fb"]:
                self.emit_fill(f)
            if len(ms) > 2:
                self.e(ms[2])
            if g in bar_at:
                for phi in bar_at[g]:
                    while nxt < n and slots[nxt]["phase"] <= opened:
                        assert nxt - g <= self.NFB - 1, "frag buffer overrun"
                        issue_one()
                    self.barrier(phi)
                    opened = phi
                    if phi in after_bar:
                        after_bar[phi]()
                    issue_reads(g, RPG)

    def emit_fill(self, f):
        if callable(f):
            f()
        elif self.o.get("dbg_drop") and f.startswith(tuple(self.o["dbg_drop"].split("+"))):
            pass
        else:
            self.e(f)

    def fb(self):
        b = 4 * (self.fbi % self.NFB)
        self.fbi += 1
        return b

    def spread(self, slots, ops):
        k = 2 * len(slots)
        n = len(ops)
        for i in range(k):
            slots[i // 2]["fa" if i % 2 == 0 else "fb"] += ops[i * n // k:(i + 1) * n // k]

    def setup(self):
        e = self.e
        if self.o.get("cpf", 1):
            e("s_getpc_b64 s[98:99]")
            e("L_pc:")
            e(f"s_sub_u32 s98, s98, L_pc-{KN}")
            e("s_subb_u32 s99, s99, 0")
            e(f"v_lshl_add_u32 v1, s{self.sW}, 6, v0")
            e("v_lshlrev_b32 v1, 7, v1")
            e(f"v_mov_b32 v2, L_code_end-{KN}-4")
            for i in range(2):
                e(f"v_min_u32 v3, v1, v2")
                e(f"global_load_dword a{44+i}, v3, s[98:99]")
                e("v_add_u32 v1, 32768, v1")
            e("s_nop 0")
        if self.o["prio"]:
            e(f"s_setprio {self.o['prio']}")
        e(f"s_and_b32 s50, s{self.sW}, 1")
        e(f"s_lshr_b32 s51, s{self.sW}, 1")
        e("v_and_b32 v3, 15, v0")
        e("v_lshrrev_b32 v4, 4, v0")
        e("v_xor_b32 v1, v4, v3")
        e("v_lshlrev_b32 v1, 4, v1")
        e("v_lshl_add_u32 v1, v3, 8, v1")
        e("s_lshl_b32 s65, s50, 13")
        e("s_lshl_b32 s66, s68, 6")
        e("s_or_b32 s65, s65, s66")
        e(f"v_xor_b32 v{self.vXA}, s65, v1")
        for s in range(1, 4):
            e(f"v_xor_b32 v{self.vXA+s}, {s*64}, v{self.vXA}")
        e("v_bfe_u32 v5, v0, 4, 1")
        e("v_lshrrev_b32 v6, 5, v0")
        e("v_lshl_or_b32 v1, v5, 1, v6")
        e("v_xor_b32 v1, v1, v3")
        e("v_lshlrev_b32 v1, 4, v1")
        e(f"v_lshl_add_u32 v{self.vKA}, v3, 8, v1")
        for s in range(1, 4):
            e(f"v_xor_b32 v{self.vKA+s}, {s*64}, v{self.vKA}")
        e("v_bfe_u32 v1, v0, 2, 2")
        e("v_and_b32 v2, 1, v0")
        e("v_bfe_u32 v3, v0, 1, 1")
        e("v_lshl_or_b32 v7, v5, 2, v1")
        e("v_lshl_or_b32 v7, v7, 1, v3")
        e("v_lshlrev_b32 v7, 4, v7")
        e("v_lshl_or_b32 v7, v2, 3, v7")
        e("v_lshl_add_u32 v6, v4, 3, v1")
        e("v_lshl_add_u32 v6, v6, 9, v7")
        e("s_lshl_b32 s65, s51, 8")
        e(f"v_add_u32 v{self.vWA}, s65, v6")
        for c in range(1, 8):
            e(f"v_xor_b32 v{self.vWA+c}, {c*32}, v{self.vWA}")
        for c in range(8):
            e(f"v_add_u32 v{self.vWA+8+c}, 65536, v{self.vWA+c}")
        e("v_lshl_add_u32 v6, v4, 2, v1")
        e("v_lshl_add_u32 v6, v6, 8, v7")
        e("s_and_b32 s65, s69, 1")
        e("s_lshl_b32 s65, s65, 7")
        e("s_or_b32 s65, s65, 65536")
        e(f"v_xor_b32 v{self.vT}, s65, v6")
        e("s_lshr_b32 s65, s69, 1")
        e("s_xor_b32 s65, s65, s51")
        e("s_lshl_b32 s65, s65, 16")
        e("s_lshl_b32 s66, s51, 7")
        e("s_or_b32 s65, s65, s66")
        e(f"v_xor_b32 v{self.vT+1}, s65, v6")
        e(f"s_lshl_b32 s65, s{self.sW}, 16")
        e(f"v_lshl_add_u32 v{self.vST}, v0, 4, s65")
        e(f"s_lshl_b32 s65, s{self.sW}, 13")
        e(f"s_add_u32 s65, s65, {self.EX}")
        e(f"v_lshl_add_u32 v{self.vEXW}, v0, 4, s65")
        e(f"v_xor_b32 v{self.vEXR}, 16384, v{self.vEXW}")
        e("v_and_b32 v1, 3, v0")
        e("v_lshlrev_b32 v2, 13, v1")
        e(f"v_add_u32 v2, {self.EX}, v2")
        e("v_lshlrev_b32 v3, 11, v1")
        e(f"v_add_u32 v3, {self.slot_addr(26, 0)}, v3")
        e("v_and_b32 v1, 4, v0")
        e("v_cmp_eq_u32 vcc, 0, v1")
        e("v_cndmask_b32 v2, v3, v2, vcc")
        e(f"s_lshl_b32 s65, s{self.sW}, 2")
        e(f"v_add_u32 v{self.vFL}, s65, v2")
        for i in range(4):
            e(f"v_mov_b32 v{self.ONE+i}, 0x3f803f80")
        e(f"v_mov_b32 v{self.vMP}, 0xff800000")
        e(f"v_mov_b32 v{self.vMP+1}, 0xff800000")
        e(f"s_lshl_b32 s{self.sRS}, s68, 18")
        e("s_waitcnt lgkmcnt(0)")
        if self.o.get("wsoff"):
            e(f"s_add_u32 s18, s18, {self.o['wsoff'] << 20}")
            e("s_addc_u32 s19, s19, 0")
        e("s_lshl_b32 s66, s61, 20")
        e("s_lshl_b32 s67, s63, 10")
        e("s_add_u32 s66, s66, s67")
        e(f"s_add_u32 s{self.sWS}, s18, s66")
        e(f"s_addc_u32 s{self.sWS+1}, s19, 0")
        e(f"s_mov_b32 s{self.sWS+2}, {(1 << 20) - 15*1024}")
        e(f"s_mov_b32 s{self.sWS+3}, 0x20000")
        self.tail_srds()
        if self.o.get("tlbw") and not getattr(self, "_in_loader", False):
            e("v_mov_b32 v1, 0")
            e(f"buffer_load_dword a46, v1, s[{self.sRD}:{self.sRD+3}], 0 offen nt")
            e(f"buffer_load_dword a47, v1, s[{self.sOUT}:{self.sOUT+3}], 0 offen nt")
            e(f"buffer_load_dword a43, v1, s[{self.sIN}:{self.sIN+3}], 0 offen nt")

    def slot(self, phase, reads, mfma, need):
        return dict(phase=phase, reads=reads, mfma=mfma, need=need, fa=[], fb=[])

    def qproj_slots(self):
        slots = []
        xphase = {}
        XB = self.S[0]
        for phi in range(10):
            first = len(slots)
            xr = []
            for upper, item in enumerate(self.PH[phi]):
                kind, n = item[0], int(item[1:])
                base = self.slot_addr(phi, upper)
                if kind == "x":
                    for s in range(4):
                        for qq in range(2):
                            a = XB + (n % 2) * 32 + 8 * s + 4 * qq
                            xr.append(((phi, "x", n, s, qq),
                                       f"ds_read_b128 {vr(a)}, v{self.vXA+s} offset:{base+qq*4096}"))
                    xphase[n] = phi
                    continue
                for c in range(8):
                    fb = self.fb()
                    va = self.vWA + c + 8 * upper
                    o = base % 65536
                    tg = [(phi, "w", n, c, g) for g in range(2)]
                    reads = [(tg[g], f"ds_read_b64_tr_b16 {ar(fb+2*g, 2)}, v{va} offset:{o+g*4*512}") for g in range(2)]
                    ch, s = n // 4, n % 4
                    ms = []
                    for qq in range(2):
                        d = self.O + 8 * c + 4 * qq
                        a = XB + (ch % 2) * 32 + 8 * s + 4 * qq
                        ms.append(f"{MF} {vr(d)}, {ar(fb)}, {vr(a)}, {'0' if n == 0 else vr(d)}")
                    slots.append(self.slot(phi, reads, ms, tg + [(xphase[ch], "x", ch, s, qq) for qq in range(2)]))
            if xr:
                if phi == 0:
                    slots[first]["reads"] = xr[:2] + slots[first]["reads"]
                    xr = xr[2:]
                    first += 2
                for i, r in enumerate(xr):
                    slots[first + i]["reads"].insert(0, r)
        return slots

    def q_convert(self, ks):
        ops = []
        for qq in range(2):
            q = self.Q + 16 * qq + 4 * ks
            for T in range(2):
                d = self.O + 8 * (2 * ks + T) + 4 * qq
                for i in range(4):
                    ops.append(f"v_mul_f32 v{d+i}, s79, v{d+i}")
                ops.append(f"v_cvt_pk_bf16_f32 v{q+2*T}, v{d}, v{d+1}")
                ops.append(f"v_cvt_pk_bf16_f32 v{q+2*T+1}, v{d+2}, v{d+3}")
        for qq in range(2):
            q = self.Q + 16 * qq + 4 * ks
            ops.append(f"v_permlane16_swap_b32 v{q}, v{q+2}")
            ops.append(f"v_permlane16_swap_b32 v{q+1}, v{q+3}")
        return ops

    def k_slot(self, tau, kt, ks, first_c, base=None):
        phi = 10 + tau // 2
        fb = self.fb()
        tag = (phi, "k", tau, kt, ks)
        o = (self.slot_addr(phi, 0) if base is None else base) + (tau % 2) * 8192 + kt * 4096
        reads = [(tag, f"ds_read_b128 {ar(fb)}, v{self.vKA+ks} offset:{o}")]
        ms = []
        for qq in range(2):
            d = self.S[tau % 2] + 8 * qq + 4 * kt
            C = vr(d) if ks else ("0" if first_c else vr(self.C + 4 * qq))
            ms.append(f"{MF} {vr(d)}, {ar(fb)}, {vr(self.Q+16*qq+4*ks)}, {C}")
        return self.slot(phi, reads, ms, [tag])

    def v_slot(self, tau, dt):
        phi = 11 + tau // 2
        fb = self.fb()
        o = self.slot_addr(phi, 1) % 65536 + (tau % 2) * 8192
        tg = [(phi, "v", tau, dt, g) for g in range(2)]
        reads = [(tg[g], f"ds_read_b64_tr_b16 {ar(fb+2*g, 2)}, v{self.vVA+dt} offset:{o+g*4096}") for g in range(2)]
        ms = []
        for qq in range(2):
            d = self.O + 8 * dt + 4 * qq
            ms.append(f"{MF} {vr(d)}, {ar(fb)}, {vr(self.P[tau % 2]+4*qq)}, {'0' if tau == 0 else vr(d)}")
        return self.slot(phi, reads, ms, tg)

    def sum_mfma(self, tau, qq):
        d = self.LS + 4 * qq
        return f"{MF} {vr(d)}, {vr(self.ONE)}, {vr(self.P[tau % 2]+4*qq)}, {'0' if tau == 0 else vr(d)}"

    def sm_place(self, it, t, sub=False):
        r = self.S[t % 2]
        pw = self.P[t % 2]
        per = 16 // len(it)
        for j in range(16):
            s = it[j // per]
            where = "fa" if j % per == 0 else "fb"
            if sub:
                ps = it[(j - 1) // per] if j else it[0]
                pw_ = ("fa" if (j - 1) % per == 0 and per > 1 else "fb") if j else "fa"
                ps[pw_].append(f"v_sub_f32 v{r+j}, v{r+j}, v{self.vM+j//8}")
            s[where].append(f"v_exp_f32 v{r+j}, v{r+j}")
            if per == 1 and self.o.get("cvtlate", 1):
                if j >= 8:
                    k = j - 8
                    s["fb"].append(f"v_cvt_pk_bf16_f32 v{pw+k}, v{r+2*k}, v{r+2*k+1}")
            elif j >= 2 and j % 2 == 0:
                s["fb"].append(f"v_cvt_pk_bf16_f32 v{pw+j//2-1}, v{r+j-2}, v{r+j-1}")
        if not (per == 1 and self.o.get("cvtlate", 1)):
            it[-1]["fb"].append(f"v_cvt_pk_bf16_f32 v{pw+7}, v{r+14}, v{r+15}")

    def max_ops(self, regs, m, init=None):
        ops = []
        regs = list(regs)
        cur = init
        if cur is None:
            ops.append(f"v_max_f32 v{m}, v{regs[0]}, v{regs[1]}")
            regs = regs[2:]
            cur = m
        while regs:
            if len(regs) >= 2:
                ops.append(f"v_max3_f32 v{m}, v{cur}, v{regs[0]}, v{regs[1]}")
                regs = regs[2:]
            else:
                ops.append(f"v_max_f32 v{m}, v{cur}, v{regs[0]}")
                regs = regs[1:]
            cur = m
        return ops

    def xlane_max(self, m, tmp):
        return [f"v_mov_b32 v{tmp}, v{m}", f"v_permlane32_swap_b32 v{tmp}, v{m}", f"v_max_f32 v{m}, v{m}, v{tmp}",
                f"v_mov_b32 v{tmp}, v{m}", f"v_permlane16_swap_b32 v{tmp}, v{m}", f"v_max_f32 v{m}, v{m}, v{tmp}"]

    def attention_slots(self):
        slots = [self.k_slot(0, kt, ks, True) for ks in range(4) for kt in range(2)]
        s1 = [self.k_slot(1, kt, ks, True) for kt in range(2) for ks in range(4)]
        a, b = [], []
        for qq, lst in ((0, a), (1, b)):
            r = self.S[0] + 8 * qq
            lst += self.max_ops(range(r, r + 8), self.vM + qq, self.vMP + qq)
            lst += self.xlane_max(self.vM + qq, 1 + qq)
            lst += [f"v_sub_f32 v{self.C+4*qq+i}, 0, v{self.vM+qq}" for i in range(4)]
        ops = [x for p in zip(a, b) for x in p]
        self.spread(s1[1:4], ops)
        self.sm_place(s1[4:], 0, True)
        slots += s1
        for t in range(1, 31):
            it = [self.k_slot(t + 1, kt, ks, False) for kt in range(2) for ks in range(4)]
            it += [self.v_slot(t - 1, dt) for dt in range(8)]
            if t == 1:
                self.sm_place(it[4:12], t, True)
            else:
                self.sm_place(it, t)
            sp = self.o.get("sumpos", (3, 7))
            for qq in range(2):
                it[sp[qq]]["mfma"].append(self.sum_mfma(t - 1, qq))
            slots += it
        it = [self.v_slot(30, dt) for dt in range(8)]
        self.sm_place(it, 31)
        for qq in range(2):
            it[qq]["mfma"].append(self.sum_mfma(30, qq))
        slots += it
        it = [self.v_slot(31, dt) for dt in range(8)]
        for qq in range(2):
            it[qq]["mfma"].append(self.sum_mfma(31, qq))
        slots += it
        return slots

    def o_convert(self, f):
        ops = []
        for qq in range(2):
            pk = self.S[0] + 8 * f + 4 * qq
            for T in range(2):
                r = self.O + 8 * (2 * f + T) + 4 * qq
                for i in range(4):
                    ops.append(f"v_mul_f32 v{r+i}, v{1+qq}, v{r+i}")
                ops.append(f"v_cvt_pk_bf16_f32 v{pk+2*T}, v{r}, v{r+1}")
                ops.append(f"v_cvt_pk_bf16_f32 v{pk+2*T+1}, v{r+2}, v{r+3}")

            def wr(pk=pk, qq=qq):
                self.e(f"ds_write_b128 v{self.vEXW}, {vr(pk)} offset:{(2*f+qq)*1024}")
                self.lg.push((27, "ow"))
            ops.append(wr)
        return ops

    def outproj_slots(self):
        slots = []
        for pi in range(8):
            phi = 27 + pi
            blk, a = pi // 2, pi % 2
            for oth in range(2):
                for k in range(2):
                    f = 2 * a + k
                    for c in range(4):
                        fb = self.fb()
                        o = self.slot_addr(phi, 0) + k * 8192
                        tg = [(phi, "o", oth, k, c, g) for g in range(2)]
                        reads = [(tg[g], f"ds_read_b64_tr_b16 {ar(fb+2*g, 2)}, v{self.vOA+4*oth+c} offset:{o+g*4096}")
                                 for g in range(2)]
                        need = list(tg)
                        ms = []
                        for qq in range(2):
                            if oth:
                                bq = self.Q + 8 * f + 4 * qq
                                need.append((27, "of", f, qq))
                            else:
                                bq = self.S[0] + 8 * f + 4 * qq
                            d = self.O + (blk % 2) * 32 + 16 * qq + 4 * c
                            C = "0" if (a == 0 and oth == 0 and k == 0) else vr(d)
                            ms.append(f"{MF} {vr(d)}, {ar(fb)}, {vr(bq)}, {C}")
                        slots.append(self.slot(phi, reads, ms, need))
        return slots

    def store_ops(self, blk):
        ops = [f"s_xor_b32 s{self.sT}, s{self.sRS}, {blk << 18}"]
        for k in range(2):
            for qq in range(2):
                d = self.O + (blk % 2) * 32 + 16 * qq + 8 * k
                pk = self.C + (blk % 2) * 16 + 8 * k + 4 * qq
                for i in range(4):
                    ops.append(f"v_cvt_pk_bf16_f32 v{pk+i}, v{d+2*i}, v{d+2*i+1}")
                if k or qq:
                    ops.append(f"s_add_u32 s{self.sT}, s{self.sT}, 16384")

                def st(pk=pk):
                    self.e(f"buffer_store_dwordx4 {vr(pk)}, v{self.vST}, s[{self.sWS}:{self.sWS+3}], s{self.sT} offen {self.o.get('st_flags', 'sc1').replace('+', ' ')}")
                    self.vm.push(blk)
                ops.append(st)
        return ops

    def ack_ops(self, blk):
        def f():
            self.vm.need(lambda t: t <= blk)
            self.e(f"ds_add_u32 v3, v4 offset:{4*blk}")
            self.lg.push((99, "ack"))
        return [f]

    def compute(self):
        e = self.e
        self.fbi = 0
        self.setup()
        if self.stamps:
            e(f"v_mov_b32 v{self.vS1}, 0")
            e(f"v_mov_b32 v{self.vS2}, 0")
            e(f"v_writelane_b32 v{self.vS1}, s70, 0")
        self.stamp("setup")
        sc = math.log2(math.e) / math.sqrt(128.0)
        e(f"s_mov_b32 s79, {f32(sc)}")
        qs = self.qproj_slots()
        at = self.attention_slots()
        os_ = self.outproj_slots()
        self.spread(qs[-4:-2], self.q_convert(0))
        self.spread(qs[-2:], self.q_convert(1))
        self.spread(at[0:2], self.q_convert(2))
        self.spread(at[2:4], self.q_convert(3))
        adr = [f"v_xor_b32 v{self.vVA+d}, {d*32}, v{self.vT}" for d in range(8)]
        adr += [f"v_xor_b32 v{self.vOA+4*o+c}, {o*65536+c*32}, v{self.vT+1}" for o in range(2) for c in range(4)]
        self.spread(at[4:8], adr)

        def re_label(slots, g, nxt):
            self.re_reads = [r for s in slots[g:nxt] for r in s["reads"]]
            assert all(s["phase"] == 10 for s in slots[g:nxt])
            e("L_re_compute:")
        at[8]["label"] = re_label
        L0, L1 = self.LS, self.LS + 4

        def vote():
            e(f"v_add_f32 v4, v{L0}, v{L1}")
            e(f"v_cmp_nlt_f32 vcc, v4, v5")
            e(f"v_rcp_f32 v1, v{L0}")
            e(f"v_rcp_f32 v2, v{L1}")
            e("s_cmp_lg_u64 vcc, 0")
            e(f"s_cselect_b32 s52, s{self.sMODE}, 0")
            e("v_mov_b32 v3, s52")
            e(f"ds_write_b32 v{self.vFL}, v3")
            self.lg.push((26, "vote"))
        at[-9]["fb"].append(f"v_mov_b32 v5, {f32(self.o['thresh'])}")
        at[-5]["fb"].append(vote)

        def after27():
            e(f"v_and_b32 v3, {~1023 & 0xffffffff}, v{self.vEXW}")
            e("ds_read_b128 v[4:7], v3")
            self.lg.push((27, "vr"))
        save = self.o["BOFF"]
        e("s_waitcnt vmcnt(0)")
        self.barrier(0)
        self.tail_boff = 4
        self.run_slots_main(qs + at, after27)
        self.stamp("attn", 1)
        for s in os_[:6]:
            for tag, text in s["reads"]:
                e(text)
                self.lg.push(tag)
            s["issued"] = -8
        self.lg.need(lambda t: t == (27, "vr"))
        e("v_or3_b32 v4, v4, v5, v6")
        e("v_or_b32 v4, v4, v7")
        e("v_readfirstlane_b32 s52, v4")
        e("s_cmp_lg_u32 s52, 0")
        e("s_cbranch_scc1 L_safe_compute")
        for op in self.o_convert(0) + self.o_convert(1):
            self.emit_fill(op)
        self.spread(os_[0:4], self.o_convert(2) + self.o_convert(3))

        def of_reads():
            self.plain_barrier(lambda t: t == (27, "ow"))
            for f in range(4):
                for qq in range(2):
                    e(f"ds_read_b128 {vr(self.Q+8*f+4*qq)}, v{self.vEXR} offset:{(2*f+qq)*1024}")
                    self.lg.push((27, "of", f, qq))
        os_[5]["fb"].append(of_reads)
        os_[6]["fb"] += [f"v_mov_b32 v3, {self.EX}", "v_mov_b32 v4, 0", "v_cmp_eq_u32 vcc, 0, v0",
                         "v_cndmask_b32 v4, 0, 1, vcc"]
        AD = self.o["ackdist"]
        for blk in range(3):
            self.spread(os_[32 * (blk + 1) + 2:32 * (blk + 1) + 8], self.store_ops(blk))
            j = 32 * (blk + 1) + 8 + AD
            if j < len(os_):
                os_[j]["fb"] += self.ack_ops(blk)
        self.run_slots(os_, 27)
        for op in self.store_ops(3):
            self.emit_fill(op)
        self.stamp("outproj", 1)
        for blk in range(4):
            if 32 * (blk + 1) + 8 + AD >= len(os_):
                for op in self.ack_ops(blk):
                    self.emit_fill(op)
        self.stamp("acked", 1)
        self.poll_flags("L_poll_c", "3")
        self.stamp("polled", 1)
        e("s_xor_b32 s65, s68, 3")
        e("s_lshl_b32 s66, s65, 18")
        e("s_lshl_b32 s67, s63, 14")
        e("s_add_u32 s66, s66, s67")
        e(f"s_lshl_b32 s67, s{self.sW}, 8")
        e("s_add_u32 s66, s66, s67")
        e("v_lshlrev_b32 v1, 2, v0")
        for i in range(16):
            if i % 4 == 0 and i:
                e("s_add_u32 s66, s66, 4096")
            e(f"buffer_load_dword v{48+i}, v1, s[{self.sRD}:{self.sRD+3}], s66 offen offset:{(i%4)*1024} sc1")
        e("v_lshrrev_b32 v2, 2, v0")
        e("v_lshlrev_b32 v2, 10, v2")
        e("v_bfe_u32 v3, v0, 1, 1")
        e("v_lshl_add_u32 v2, v3, 5, v2")
        e("v_and_b32 v3, 1, v0")
        e("v_lshl_add_u32 v2, v3, 2, v2")
        self.unit_offset("s65", "s67")
        e(f"s_lshl_b32 s52, s{self.sW}, 3")
        e("s_add_u32 s67, s67, s52")
        e("s_mov_b32 s66, 0xffff0000")
        for i in range(16):
            e(f"s_waitcnt vmcnt({15-i})")
            if i == 0:
                e("v_lshlrev_b32 v4, 16, v48")
                e("v_and_b32 v5, s66, v48")
            else:
                e(f"v_lshlrev_b32 v6, 16, v{48+i}")
                e(f"v_and_b32 v7, s66, v{48+i}")
                e("v_add_f32 v4, v4, v6")
                e("v_add_f32 v5, v5, v7")
        e("v_cvt_pk_bf16_f32 v4, v4, v5")
        e(f"buffer_store_dword v4, v2, s[{self.sOUT}:{self.sOUT+3}], s67 offen")
        self.stamp("reduced", 1)
        if self.stamps:
            e("s_waitcnt vmcnt(0)")
            self.stamp("drain", 1)
            e("s_add_u32 s44, s18, 0x2000000")
            e("s_addc_u32 s45, s19, 0")
            e("s_mov_b32 s46, 0x4000000")
            e("s_mov_b32 s47, 0x20000")
            e("s_mul_i32 s65, s2, 4")
            e(f"s_add_u32 s65, s65, s{self.sW}")
            e("s_mul_i32 s65, s65, 512")
            e("v_lshlrev_b32 v1, 2, v0")
            e("s_getreg_b32 s66, hwreg(HW_REG_XCC_ID)")
            e(f"v_writelane_b32 v{self.vS1}, s66, 63")
            e(f"buffer_store_dword v{self.vS1}, v1, s[44:47], s65 offen")
            e(f"buffer_store_dword v{self.vS2}, v1, s[44:47], s65 offen offset:256")
        e("L_end:")
        e("s_endpgm")
        e("L_safe_compute:")
        e("s_waitcnt lgkmcnt(0)")
        e("s_barrier")
        e(f"s_mov_b32 s{self.sMODE}, 0")
        e("s_mov_b32 s67, 0")
        e("L_safe_c_loop:")
        e("s_barrier")
        self.fbi = 0
        for tau in range(2):
            ks_ = [self.k_slot(tau, kt, ks, True, base=0) for kt in range(2) for ks in range(4)]
            for s in ks_:
                e(s["reads"][0][1])
            e("s_waitcnt lgkmcnt(0)")
            for s in ks_:
                e(s["mfma"][0])
                e(s["mfma"][1])
            e("s_nop 7")
            self.fbi = 0
        e("s_barrier")
        for qq in range(2):
            regs = [self.S[tau] + 8 * qq + i for tau in range(2) for i in range(8)]
            for op in self.max_ops(regs, self.vMP + qq, self.vMP + qq):
                e(op)
        e("s_add_u32 s67, s67, 1")
        e("s_cmp_lt_u32 s67, 16")
        e("s_cbranch_scc1 L_safe_c_loop")
        e("s_barrier")
        ks_ = [self.k_slot(0, kt, ks, True) for kt in range(2) for ks in range(4)]
        for s in ks_:
            e(s["reads"][0][1])
        e("s_waitcnt lgkmcnt(0)")
        for s in ks_:
            e(s["mfma"][0])
            e(s["mfma"][1])
        e("s_nop 7")
        for tag, text in self.re_reads:
            e(text)
        e("s_waitcnt lgkmcnt(0)")
        e("s_branch L_re_compute")

    def run_slots_main(self, slots, after27):
        n = len(slots)
        extra = self.slot(27, [], [], [])
        save = self.o["BOFF"]
        self._tail_gap = n - 4
        self.run_slots_tail(slots, after27)

    def run_slots_tail(self, slots, after27):
        def bar():
            assert all("issued" in x for x in slots)
            self.barrier(27)
            after27()
        slots[self._tail_gap]["fb"].append(bar)
        self.run_slots(slots, 0)

    def main_kernel(self):
        self.events = []
        self.prologue()
        self.compute()
        self.loader()
        self.e("L_code_end:")
        return hazard_pass(self.L)


def kd(name, vgpr, accum, sgpr=102):
    return f""".amdhsa_kernel {name}
  .amdhsa_next_free_vgpr {vgpr}
  .amdhsa_next_free_sgpr {sgpr}
  .amdhsa_accum_offset {accum}
  .amdhsa_group_segment_fixed_size 0
  .amdhsa_kernarg_size 64
  .amdhsa_user_sgpr_count 2
  .amdhsa_user_sgpr_kernarg_segment_ptr 1
  .amdhsa_system_sgpr_workgroup_id_x 1
.end_amdhsa_kernel
"""


def build(stamps=0, opts=None):
    g = Gen(stamps, opts)
    body, added = g.main_kernel()
    txt = HEADER
    txt += "; @launch grid=(256,1,1) block=(512,1,1) lds=163840\n"
    txt += '.amdgcn_target "amdgcn-amd-amdhsa--gfx950"\n.text\n'
    txt += f".globl {KN}\n.p2align 8\n.type {KN},@function\n{KN}:\n" + "\n".join(body) + "\n"
    txt += '.section .rodata,"a"\n.p2align 6\n' + kd(KN, 256, g.ACC)
    txt += "; stamps: " + " ".join(g.stamp_names) + "\n"
    return txt, added


if __name__ == "__main__":
    import argparse
    ap = argparse.ArgumentParser()
    ap.add_argument("out")
    ap.add_argument("--stamps", type=int, default=0)
    ap.add_argument("--opt", action="append", default=[])
    a = ap.parse_args()
    opts = {}
    for o in a.opt:
        k, v = o.split("=")
        try:
            opts[k] = int(v)
        except ValueError:
            try:
                opts[k] = float(v)
            except ValueError:
                opts[k] = v
    txt, added = build(a.stamps, opts)
    open(a.out, "w").write(txt)
    print("wrote", a.out, "lines", txt.count("\n"), "nop states added", added)
```

```python
import math
import struct
from asmlib import hazard_pass, Queue

KN = "standalone__gqa_block_cached__near_ridge_kernel"
HEADER = """; Kernarg layout for this problem (64 bytes, ptrs only, base s[0:1]):
"""


def f32(x):
    return "0x%08x" % struct.unpack("<I", struct.pack("<f", x))[0]


MF = "v_mfma_f32_16x16x32_bf16"


def vr(a, n=4):
    return f"v[{a}:{a+n-1}]"


def ar(a, n=4):
    return f"a[{a}:{a+n-1}]"


class Gen:
    def __init__(self, stamps=0, opts=None):
        self.stamps = stamps
        self.o = dict(DMAX=10, BOFF=6, RPG=2, WG=4, kv_flags="nt", w_flags="nt", o_flags="", x_flags="", prio=1,
                      d2=3, thresh=2.0 ** 60, ackdist=60, cpf=1, pk=1, tail="flag")
        self.o.update(opts or {})
        self.L = []
        self.lg = Queue("lgkmcnt", 15, self.e)
        self.vm = Queue("vmcnt", 63, self.e)
        self.nstamp = 0
        self.stamp_names = ["start"]
        self.vKA, self.vXA = 8, 12
        self.vOA = 12
        self.vWA = 16
        self.vVA = 16
        self.vST, self.vEXW, self.vEXR, self.vFL = 32, 33, 34, 35
        self.vM, self.vMP = 36, 38
        self.vS1, self.vS2 = 40, 41
        self.vT = 42
        self.ONE = 44
        b = 48
        self.S = [b, b + 16]
        self.C = b + 32
        self.P = [b + 40, b + 48]
        self.LS = b + 56
        self.O = b + 64
        self.Q = b + 128
        self.ACC = b + 160
        self.NFB = 12
        self.sX, self.sWQ, self.sK, self.sV, self.sWO, self.sWS = 20, 24, 28, 32, 36, 40
        self.sDBG, self.sOUT, self.sRD, self.sIN = 80, 84, 88, 92
        self.sW = 3
        self.sT = 53
        self.sRW, self.sRX, self.sRO = 56, 57, 58
        self.sMODE = 78
        self.sSC = 96
        self.EX = 131072
        self.PH = self.phases()
        self.NPH = len(self.PH)

    def e(self, s):
        self.L.append(s if s.startswith("    ") or s.endswith(":") else "    " + s)

    def slot_addr(self, phi, upper):
        return (65536 if upper else 0) + (phi % 4) * 16384

    def stamp(self, name="", level=1):
        if not self.stamps or level > self.stamps:
            return
        i = self.nstamp
        self.nstamp += 1
        assert i < 61
        self.stamp_names.append(name)
        self.lg.drain()
        self.e("s_memrealtime s[72:73]")
        self.e("s_memtime s[74:75]")
        self.e("s_waitcnt lgkmcnt(0)")
        self.e(f"v_writelane_b32 v{self.vS1}, s72, {i+1}")
        self.e(f"v_writelane_b32 v{self.vS2}, s74, {i+1}")

    def phases(self):
        ph = [("x0", "w0"), ("x1", "w1"), ("w2", "w3"), ("w4", "w5"), ("x2", "w6"), ("w7", "w8"),
              ("w9", "w10"), ("x3", "w11"), ("w12", "w13"), ("w14", "w15"), ("K0", None)]
        for j in range(1, 16):
            ph.append((f"K{j}", f"V{j-1}"))
        ph.append((None, "V15"))
        for blk in range(8):
            ph.append((f"o{blk}", f"o{blk+8}"))
        return ph

    def prologue(self):
        e = self.e
        e("s_cmp_ge_u32 s2, 256")
        e("s_cbranch_scc1 L_end")
        e("s_memrealtime s[70:71]")
        e("s_load_dwordx16 s[4:19], s[0:1], 0")
        e("v_lshrrev_b32 v1, 6, v0")
        e("v_and_b32 v0, 63, v0")
        e(f"v_readfirstlane_b32 s{self.sW}, v1")
        e("s_and_b32 s60, s2, 7")
        e("s_lshr_b32 s61, s2, 4")
        e("s_bfe_u32 s62, s2, 0x10003")
        e("s_lshl_b32 s63, s60, 1")
        e("s_add_u32 s63, s63, s62")
        e("s_and_b32 s68, s61, 3")
        e(f"s_cmp_lt_u32 s{self.sW}, 4")
        e("s_cbranch_scc1 L_compute")

    def srd(self, s, lo, off_s, shift, nrec):
        e = self.e
        if off_s is None:
            e(f"s_mov_b32 s{s}, s{lo}")
            e(f"s_mov_b32 s{s+1}, s{lo+1}")
        else:
            e(f"s_lshl_b32 s66, s{off_s}, {shift}")
            e(f"s_add_u32 s{s}, s{lo}, s66")
            e(f"s_addc_u32 s{s+1}, s{lo+1}, 0")
        e(f"s_mov_b32 s{s+2}, {nrec}")
        e(f"s_mov_b32 s{s+3}, 0x20000")

    def tail_srds(self, loader):
        e = self.e
        self.srd(self.sRD, 18, 61, 20, 1 << 20)
        self.srd(self.sOUT, 14, 61, 16, 65536)
        if True:
            e("s_lshl_b32 s66, s61, 13")
            e("s_add_u32 s66, s66, 0x1000000")
            e(f"s_add_u32 s{self.sIN}, s18, s66")
            e(f"s_addc_u32 s{self.sIN+1}, s19, 0")
            e(f"s_mov_b32 s{self.sIN+2}, 8192")
            e(f"s_mov_b32 s{self.sIN+3}, 0x20000")

    def dma_half(self, phi, upper, hsel, base=None, so_reg=None):
        item = self.PH[phi][upper]
        if item is None:
            return
        e = self.e
        kind, n = item[0], int(item[1:])
        if base is None:
            base = self.slot_addr(phi, upper)
        if kind == "x":
            srd, vo, so, rs, hs, fl = self.sX, [8, 9], n * 256, self.sRX, 32768, "x_flags"
        elif kind == "w":
            srd, vo, so, rs, hs, fl = self.sWQ, [10, 11], n * 32 * 8192, self.sRW, 16 * 8192, "w_flags"
        elif kind == "K":
            srd, vo, so, rs, hs, fl = self.sK, [12, 13], n * 16384, None, 8192, "kv_flags"
        elif kind == "V":
            srd, vo, so, rs, hs, fl = self.sV, [14, 15], n * 16384, None, 8192, "kv_flags"
        else:
            srd, vo, so, rs, hs, fl = self.sWO, [16, 17], (n // 8) * 131072 + (n % 8) * 128, self.sRO, 65536, "o_flags"
        fl = self.o[fl].replace("+", " ")
        st = self.sT
        if rs is None:
            e(f"s_add_u32 m0, s{46+hsel}, {base}")
            e(f"s_add_u32 s{st}, s{44+hsel}, {so if so_reg is None else so_reg}")
        else:
            e(f"s_add_u32 m0, s48, {base+hsel*8192}")
            e(f"s_xor_b32 s{st}, s{rs}, {so+hsel*hs}")
        e(f"buffer_load_dwordx4 v{vo[0]}, s[{srd}:{srd+3}], s{st} offen {fl} lds")
        e(f"buffer_load_dwordx4 v{vo[1]}, s[{srd}:{srd+3}], s{st} offen offset:1024 {fl} lds")
        self.vm.push(phi)
        self.vm.push(phi)

    def dma_phase(self, phi):
        kv = 10 <= phi <= 26
        for a in range(2):
            for b in range(2):
                self.dma_half(phi, *((b, a) if kv else (a, b)))

    def unit_offset(self, spair, sdst):
        e = self.e
        e(f"s_lshl_b32 {sdst}, {spair}, 1")
        e("s_lshr_b32 s52, s63, 3")
        e(f"s_add_u32 {sdst}, {sdst}, s52")
        e("s_and_b32 s52, s61, 7")
        e(f"s_xor_b32 {sdst}, {sdst}, s52")
        e(f"s_lshl_b32 {sdst}, {sdst}, 7")
        e("s_bfe_u32 s52, s63, 0x10002")
        e("s_lshl_b32 s52, s52, 6")
        e(f"s_add_u32 {sdst}, {sdst}, s52")
        e("s_and_b32 s52, s63, 3")
        e("s_lshl_b32 s52, s52, 14")
        e(f"s_add_u32 {sdst}, {sdst}, s52")

    def loader(self):
        e = self.e
        self.vm.q = []
        e("s_lshr_b32 s69, s61, 2")
        e("s_and_b32 s76, s60, 3")
        e("s_lshl_b32 s77, s62, 1")
        e("s_xor_b32 s76, s76, s77")
        e("s_xor_b32 s77, s76, s69")
        e("s_lshl_b32 s76, s76, 2")
        e("s_xor_b32 s76, s76, s61")
        e(f"s_sub_u32 s49, s{self.sW}, 4")
        e("s_lshl_b32 s48, s49, 11")
        e(f"s_lshl_b32 s{self.sRW}, s76, 18")
        e(f"s_lshl_b32 s{self.sRX}, s77, 8")
        e("v_lshrrev_b32 v2, 4, v0")
        e("v_and_b32 v3, 15, v0")
        e("v_lshrrev_b32 v4, 5, v0")
        e("v_and_b32 v5, 31, v0")
        e("s_and_b32 s65, s49, 1")
        e("s_lshl_b32 s65, s65, 3")
        e("v_or_b32 v6, s65, v2")
        e("v_xor_b32 v6, v6, v3")
        e("v_lshlrev_b32 v6, 4, v6")
        e("s_lshl_b32 s65, s49, 3")
        e("v_add_u32 v7, s65, v2")
        e("v_lshl_add_u32 v8, v7, 10, v6")
        e("v_xor_b32 v9, 64, v8")
        e("v_add_u32 v9, 3072, v9")
        e("s_lshl_b32 s65, s49, 2")
        e("v_add_u32 v18, s65, v4")
        e("s_lshr_b32 s65, s49, 1")
        e("s_lshl_b32 s65, s65, 3")
        e("v_lshl_or_b32 v19, v4, 1, s65")
        e("v_xor_b32 v19, v19, v5")
        e("v_lshlrev_b32 v19, 4, v19")
        e("v_lshl_add_u32 v10, v18, 13, v19")
        e("v_xor_b32 v11, 64, v10")
        e(f"v_add_u32 v11, {16384-1024}, v11")
        e("s_waitcnt lgkmcnt(0)")
        self.srd(self.sX, 4, 61, 16, 65536)
        self.srd(self.sWQ, 10, 63, 9, 511 * 8192 + 512)
        self.dma_phase(0)
        e("s_lshl_b32 s64, s61, 3")
        e("s_add_u32 s64, s64, s60")
        self.srd(self.sK, 6, 64, 18, 262144)
        self.srd(self.sV, 8, 64, 18, 262144)
        self.srd(self.sWO, 12, 63, 18, 262144)
        e("v_lshl_add_u32 v12, v7, 8, v6")
        e("v_xor_b32 v13, 64, v12")
        e("v_lshlrev_b32 v18, 1, v2")
        e("v_xor_b32 v19, v18, v3")
        e("v_lshlrev_b32 v19, 4, v19")
        e("v_lshl_add_u32 v14, v7, 8, v19")
        e("v_xor_b32 v15, 128, v14")
        e("v_and_b32 v19, 7, v0")
        e("v_xor_b32 v19, v19, v18")
        e("v_lshlrev_b32 v19, 4, v19")
        e("v_lshrrev_b32 v18, 3, v0")
        e("s_lshl_b32 s65, s49, 4")
        e("v_add_u32 v18, s65, v18")
        e("v_lshl_add_u32 v16, v18, 10, v19")
        e(f"v_add_u32 v17, {8192-1024}, v16")
        e("s_lshr_b32 s65, s61, 3")
        e("s_lshl_b32 s65, s65, 17")
        e("s_and_b32 s66, s61, 7")
        e("s_lshl_b32 s66, s66, 7")
        e(f"s_or_b32 s{self.sRO}, s65, s66")
        e("s_lshl_b32 s44, s62, 13")
        e("s_xor_b32 s45, s44, 8192")
        e("s_add_u32 s46, s44, s48")
        e("s_add_u32 s47, s45, s48")
        self.dma_phase(1)
        self.tail_srds(True)
        e(f"v_mov_b32 v21, {self.EX}")
        for i in range(4):
            e(f"v_mov_b32 v{24+i}, 0")
            e(f"v_mov_b32 v{28+i}, -1")
        e("v_lshlrev_b32 v22, 2, v0")
        e("v_lshlrev_b32 v20, 4, v0")
        e("v_mov_b32 v23, 1")
        d2 = self.o["d2"]
        CHK = 24
        items = [(p, u) for p in range(2, self.NPH) for u in range(2) if self.PH[p][u] is not None]
        done = []
        freed = set()
        opened = -1
        lvl = 0
        for gate, frees, acks in self.events:
            if gate == 27 and self.o.get("quiet", 1):
                self.vm.drain()
            if gate != "X":
                assert all(p > gate for p, u in items)
                self.vm.need(lambda t: t <= gate)
                opened = max(opened, gate)
            e("s_barrier")
            freed |= set(frees)
            if gate == "X":
                e("ds_read_b32 v4, v21")
                e("s_waitcnt lgkmcnt(0)")
                e("v_readfirstlane_b32 s65, v4")
                e("s_cmp_eq_u32 s65, -1")
                e("s_cbranch_scc1 L_safe_loader")
            for pr in acks:
                assert pr == lvl
                lvl += 1
                e("s_cmp_lg_u32 s49, 3")
                e(f"s_cbranch_scc1 L_nopub{pr}")
                e("s_memrealtime s[72:73]")
                e("s_lshl_b32 s65, s63, 3")
                e("v_lshlrev_b32 v2, 9, v0")
                e("s_waitcnt lgkmcnt(0)")
                e("v_mov_b32 v4, s72")
                e("v_mov_b32 v5, s73")
                e("s_mov_b64 exec, 0xffff")
                e(f"buffer_store_dwordx2 v[4:5], v2, s[{self.sIN}:{self.sIN+3}], s65 offen offset:{128*pr} sc0 sc1")
                e("s_mov_b64 exec, -1")
                e(f"L_nopub{pr}:")
            self.lvl0 = lvl
            dist = 2 if opened < d2 else 3
            n0 = len(self.vm.q)
            batch = []
            quiet = gate == 27 and self.o.get("quiet", 1)
            while items and not quiet:
                p, u = items[0]
                prev = p - 4 if (p < 4 or self.PH[p - 4][u] is not None) else p - 8
                ok = (p < 4 or prev in freed) and p <= opened + dist + (1 if prev == p - 8 else 0)
                if opened >= 27 and len(batch) >= self.o.get("oquota", 3) and p > opened + 2:
                    ok = False
                if not ok:
                    break
                batch.append(items.pop(0))
            for p in sorted(set(p for p, u in batch)):
                us = [u for pp, u in batch if pp == p]
                if 10 <= p <= 26:
                    seq = [(u, h) for h in range(2) for u in us]
                else:
                    seq = [(u, h) for u in us for h in range(2)]
                for u, h in seq:
                    self.dma_half(p, u, h)
            done += batch
            nissued = len(self.vm.q) - n0
            if gate == 10:
                self.re_items = [x for x in done if x[0] >= 10]
                e("L_re_loader:")
        assert not items
        if self.o["tail"] == "two":
            e("L_end:")
            e("s_endpgm")
        else:
            self.loader_tail()
        e("L_safe_loader:")
        e("s_waitcnt vmcnt(0)")
        e("s_barrier")
        e("s_mov_b32 s67, 0")
        e("L_safe_l_loop:")
        self.dma_half(10, 0, 0, base=0, so_reg="s67")
        self.dma_half(10, 0, 1, base=0, so_reg="s67")
        e("s_waitcnt vmcnt(0)")
        e("s_barrier")
        e("s_add_u32 s67, s67, 16384")
        e("s_barrier")
        e("s_cmp_lt_u32 s67, 262144")
        e("s_cbranch_scc1 L_safe_l_loop")
        for p, u in self.re_items:
            self.dma_half(p, u, 0)
            self.dma_half(p, u, 1)
        e("s_waitcnt vmcnt(0)")
        e("s_barrier")
        e("s_branch L_re_loader")

    def poll(self, lab, soff, va, vd):
        e = self.e
        e(f"v_and_b32 v{va}, 15, v0")
        e(f"v_lshlrev_b32 v{va}, 3, v{va}")
        e(f"v_mov_b32 v{vd+2}, s71")
        e("s_mov_b32 s67, 0")
        e(f"{lab}:")
        e(f"buffer_load_dwordx2 {vr(vd, 2)}, v{va}, s[{self.sIN}:{self.sIN+3}], {soff} offen sc0 sc1")
        e("s_add_u32 s67, s67, 1")
        e("s_cmp_gt_u32 s67, 0x40000")
        e(f"s_cbranch_scc1 {lab}_done")
        e("s_waitcnt vmcnt(0)")
        e(f"v_subrev_co_u32 v{vd}, vcc, s70, v{vd}")
        e("s_nop 1")
        e(f"v_subb_co_u32 v{vd+1}, vcc, v{vd+1}, v{vd+2}, vcc")
        e(f"v_lshrrev_b32 v{vd}, 24, v{vd}")
        e(f"v_or_b32 v{vd}, v{vd}, v{vd+1}")
        e(f"v_cmp_ne_u32 vcc, 0, v{vd}")
        e("s_nop 4")
        e(f"s_cbranch_vccnz {lab}")
        e(f"{lab}_done:")
        e("s_waitcnt vmcnt(0)")

    def loader_tail(self):
        e = self.e
        NL = 3 if self.o['tail'] == 'sent' else 4
        e("s_cmp_eq_u32 s49, 3")
        e("s_cbranch_scc1 L_end")
        e("s_lshl_b32 s65, s63, 9")
        e("s_lshl_b32 s66, s49, 7")
        e("s_add_u32 s65, s65, s66")
        self.poll("L_poll_l", "s65", 2, 4)
        e("s_lshl_b32 s66, s49, 18")
        e("s_lshl_b32 s67, s63, 14")
        e("s_add_u32 s66, s66, s67")
        for i in range(16):
            if i % 4 == 0 and i:
                e("s_add_u32 s66, s66, 4096")
            e(f"buffer_load_dwordx4 {vr(32+4*i)}, v20, s[{self.sRD}:{self.sRD+3}], s66 offen offset:{(i%4)*1024} sc1")
        e("v_and_b32 v2, 15, v0")
        e("v_lshlrev_b32 v2, 10, v2")
        e("v_bfe_u32 v3, v0, 4, 1")
        e("v_lshl_add_u32 v2, v3, 5, v2")
        e("v_bfe_u32 v3, v0, 5, 1")
        e("v_lshl_add_u32 v2, v3, 4, v2")
        self.unit_offset("s49", "s67")
        e("s_mov_b32 s66, 0xffff0000")
        for i in range(16):
            e(f"s_waitcnt vmcnt({15-i})")
            for k in range(4):
                r = 32 + 4 * i + k
                if i == 0:
                    e(f"v_lshlrev_b32 v{8+2*k}, 16, v{r}")
                    e(f"v_and_b32 v{9+2*k}, s66, v{r}")
                else:
                    e(f"v_lshlrev_b32 v16, 16, v{r}")
                    e(f"v_and_b32 v17, s66, v{r}")
                    e(f"v_add_f32 v{8+2*k}, v{8+2*k}, v16")
                    e(f"v_add_f32 v{9+2*k}, v{9+2*k}, v17")
        for k in range(4):
            e(f"v_cvt_pk_bf16_f32 v{16+k}, v{8+2*k}, v{9+2*k}")
        e("v_permlane16_swap_b32 v16, v18")
        e("v_permlane16_swap_b32 v17, v19")
        e(f"buffer_store_dwordx4 v[16:19], v2, s[{self.sOUT}:{self.sOUT+3}], s67 offen")
        e("L_end:")
        e("s_endpgm")

    def run_slots(self, slots):
        n = len(slots)
        DMAX, BOFF, RPG, WG = self.o["DMAX"], self.o["BOFF"], self.o["RPG"], self.o["WG"]
        first, last = {}, {}
        for j, s in enumerate(slots):
            s.setdefault("gate", s["phase"])
            first.setdefault(s["gate"], j)
            for tag, _ in s["reads"]:
                last[tag[0]] = j
        order = sorted(first, key=lambda p: first[p])
        bar_at = {}
        prev = -1
        for p in order[1:]:
            g = max(first[p] - BOFF, prev + 1, slots[first[p]].get("notbefore", 0))
            assert g < first[p] - 1
            bar_at[g] = p
            prev = g
        opened = set()
        freed = set()
        nxt = 0

        def issue_one(g):
            nonlocal nxt
            for tag, text in slots[nxt]["reads"]:
                self.e(text)
                self.lg.push(tag)
            slots[nxt]["issued"] = g
            nxt += 1

        def issue_reads(g, limit):
            k = 0
            while nxt < n and k < limit and nxt - g <= DMAX and slots[nxt]["gate"] in opened:
                issue_one(g)
                k += 1

        def barrier(p, g):
            while nxt < n and slots[nxt]["gate"] in opened:
                assert nxt - g <= self.NFB - 1, "frag buffer overrun"
                issue_one(g)
            fr = [q for q in last if last[q] < nxt and q not in freed]
            freed.update(fr)
            self.lg.need(lambda t: t[0] in fr or t[0] == 96)
            acks = self.ack_at.get(p, [])
            for pr in acks:
                self.vm.need(lambda t: t <= 2 * pr + 1)
            self.e("s_barrier")
            self.events.append((p, fr, acks))
            opened.add(p)
            self.stamp(f"B{p}", 1 if p in (0, 5, 10, 12, 19, 26, "X", 31) else 2)
            for f in slots[first[p]].get("afterbar", []):
                self.emit_fill(f)
        barrier(order[0], -1)
        issue_reads(-1, 5)
        for g, s in enumerate(slots):
            assert nxt > g, (g, nxt)
            if "label" in s:
                s["label"](slots, g, nxt)
            tags = list(s["need"])
            if any(t in tags for t in self.lg.q):
                for k in range(1, WG):
                    if (g + k) % WG and g + k < nxt and slots[g + k]["issued"] <= g - 3:
                        tags += slots[g + k]["need"]
                    else:
                        break
                self.lg.need(lambda t: t in tags)
            ms = s["mfma"]
            self.e(ms[0])
            for f in s["fa"]:
                self.emit_fill(f)
            self.e(ms[1])
            issue_reads(g, RPG if nxt - g < DMAX - 2 else 1)
            for f in s["fb"]:
                self.emit_fill(f)
            for m in ms[2:]:
                self.e(m)
            if g in bar_at:
                barrier(bar_at[g], g)
                issue_reads(g, RPG)

    def emit_fill(self, f):
        if callable(f):
            f()
        else:
            self.e(f)

    def fb(self):
        b = 4 * (self.fbi % self.NFB)
        self.fbi += 1
        return b

    def spread(self, slots, ops, wa=1, wb=1):
        n = len(ops)
        tot = (wa + wb) * len(slots)
        acc = 0
        for s in slots:
            for key, w in (("fa", wa), ("fb", wb)):
                s[key] += ops[acc * n // tot:(acc + w) * n // tot]
                acc += w

    def setup(self):
        e = self.e
        e("L_compute:")
        if self.o["cpf"]:
            e("s_getpc_b64 s[98:99]")
            e("L_pc:")
            e(f"s_sub_u32 s98, s98, L_pc-{KN}")
            e("s_subb_u32 s99, s99, 0")
            e("s_bfe_u32 s65, s2, 0x40003")
            e("s_lshl_b32 s65, s65, 2")
            e(f"s_add_u32 s65, s65, s{self.sW}")
            e("s_lshl_b32 s65, s65, 10")
            e("v_lshrrev_b32 v1, 3, v0")
            e("v_lshl_add_u32 v1, v1, 7, s65")
            e(f"v_min_u32 v1, L_code_end-{KN}-4, v1")
            e(f"global_load_dword v{self.vM}, v1, s[98:99]")
        if self.o["prio"]:
            e(f"s_setprio {self.o['prio']}")
        e(f"s_mov_b32 s{self.sMODE}, 1")
        e(f"s_and_b32 s50, s{self.sW}, 1")
        e(f"s_lshr_b32 s51, s{self.sW}, 1")
        e("v_and_b32 v3, 15, v0")
        e("v_lshrrev_b32 v4, 4, v0")
        e("v_xor_b32 v1, v4, v3")
        e("v_lshlrev_b32 v1, 4, v1")
        e("v_lshl_add_u32 v1, v3, 8, v1")
        e("s_lshl_b32 s65, s50, 13")
        e("s_lshl_b32 s66, s68, 6")
        e("s_or_b32 s65, s65, s66")
        e(f"v_xor_b32 v{self.vXA}, s65, v1")
        for s in range(1, 4):
            e(f"v_xor_b32 v{self.vXA+s}, {s*64}, v{self.vXA}")
        e("v_bfe_u32 v5, v0, 4, 1")
        e("v_lshrrev_b32 v6, 5, v0")
        e("v_lshl_or_b32 v1, v5, 1, v6")
        e("v_xor_b32 v1, v1, v3")
        e("v_lshlrev_b32 v1, 4, v1")
        e(f"v_lshl_add_u32 v{self.vKA}, v3, 8, v1")
        for s in range(1, 4):
            e(f"v_xor_b32 v{self.vKA+s}, {s*64}, v{self.vKA}")
        e("v_bfe_u32 v1, v0, 2, 2")
        e("v_and_b32 v2, 1, v0")
        e("v_bfe_u32 v3, v0, 1, 1")
        e("v_lshl_or_b32 v5, v5, 2, v1")
        e("v_lshl_or_b32 v7, v5, 1, v3")
        e("v_lshlrev_b32 v7, 4, v7")
        e("v_lshl_or_b32 v7, v2, 3, v7")
        e("v_lshl_add_u32 v6, v4, 3, v1")
        e("v_lshl_add_u32 v6, v6, 9, v7")
        e("s_lshl_b32 s65, s51, 8")
        e(f"v_add_u32 v{self.vWA}, s65, v6")
        for c in range(1, 8):
            e(f"v_xor_b32 v{self.vWA+c}, {c*32}, v{self.vWA}")
        for c in range(8):
            e(f"v_add_u32 v{self.vWA+8+c}, 65536, v{self.vWA+c}")
        e("v_lshl_add_u32 v6, v4, 2, v1")
        e(f"v_lshl_add_u32 v{self.vT}, v6, 8, v7")
        e(f"v_add_u32 v{self.vT}, 65536, v{self.vT}")
        e("v_and_b32 v7, 6, v5")
        e("v_or_b32 v7, v7, v3")
        e("v_lshlrev_b32 v7, 4, v7")
        e("v_lshl_or_b32 v7, v2, 3, v7")
        e("v_lshl_add_u32 v7, v6, 7, v7")
        e("s_lshr_b32 s65, s61, 3")
        e("s_xor_b32 s65, s65, s51")
        e("s_lshl_b32 s65, s65, 16")
        e("s_lshl_b32 s66, s51, 6")
        e("s_or_b32 s65, s65, s66")
        e(f"v_xor_b32 v{self.vT+1}, s65, v7")
        e(f"s_lshl_b32 s65, s{self.sW}, 15")
        e(f"v_lshl_add_u32 v{self.vST}, v0, 4, s65")
        e(f"s_lshl_b32 s65, s{self.sW}, 13")
        e(f"s_add_u32 s65, s65, {self.EX}")
        e(f"v_lshl_add_u32 v{self.vEXW}, v0, 4, s65")
        e(f"v_xor_b32 v{self.vEXR}, 16384, v{self.vEXW}")
        e("v_and_b32 v1, 3, v0")
        e("v_lshlrev_b32 v1, 13, v1")
        e(f"s_lshl_b32 s65, s{self.sW}, 2")
        e(f"s_add_u32 s65, s65, {self.EX+7168}")
        e(f"v_add_u32 v{self.vFL}, s65, v1")
        for i in range(4):
            e(f"v_mov_b32 v{self.ONE+i}, 0x3f803f80")
        e(f"v_mov_b32 v{self.vMP}, 0xff800000")
        e(f"v_mov_b32 v{self.vMP+1}, 0xff800000")
        sc = math.log2(math.e) / math.sqrt(128.0)
        e(f"s_mov_b32 s{self.sSC}, {f32(sc)}")
        e(f"s_mov_b32 s{self.sSC+1}, {f32(sc)}")
        e(f"s_mov_b32 s79, {f32(self.o['thresh'])}")
        e("s_waitcnt lgkmcnt(0)")
        e("s_lshl_b32 s66, s61, 20")
        e("s_lshl_b32 s67, s63, 10")
        e("s_add_u32 s66, s66, s67")
        e(f"s_add_u32 s{self.sWS}, s18, s66")
        e(f"s_addc_u32 s{self.sWS+1}, s19, 0")
        e(f"s_mov_b32 s{self.sWS+2}, {(1 << 20) - 15*1024}")
        e(f"s_mov_b32 s{self.sWS+3}, 0x20000")
        self.tail_srds(False)
        if self.o.get("tlbw", 0):
            e("s_lshl_b32 s64, s61, 3")
            e("s_add_u32 s64, s64, s60")
            self.srd(self.sK, 6, 64, 18, 262144)
            self.srd(self.sV, 8, 64, 18, 262144)
            self.srd(self.sWO, 12, 63, 18, 262144)
            st = self.o["tlbw"]
            e(f"v_mul_u32_u24 v1, {st}, v0")
            e(f"s_mul_i32 s65, s{self.sW}, {st*64}")
            e(f"buffer_load_dword a40, v1, s[{self.sK}:{self.sK+3}], s65 offen nt")
            e(f"buffer_load_dword a41, v1, s[{self.sV}:{self.sV+3}], s65 offen nt")
            e("v_mov_b32 v1, 0")
            e(f"buffer_load_dword a42, v1, s[{self.sWO}:{self.sWO+3}], 0 offen")
            e(f"buffer_load_dword a43, v1, s[{self.sRD}:{self.sRD+3}], 0 offen nt")

    def sentinel_ops(self):
        q = self.Q
        ops = ["v_lshlrev_b32 v1, 4, v0"] + [f"v_mov_b32 v{q+i}, -1" for i in range(4)]
        ops += ["s_lshl_b32 s65, s63, 14", f"s_lshl_b32 s66, s{self.sW}, 12", "s_add_u32 s65, s65, s66",
                f"s_add_u32 s65, s65, {3 << 18}"]
        ops += [f"buffer_store_dwordx4 {vr(q)}, v1, s[{self.sRD}:{self.sRD+3}], s65 offen offset:{i*1024} sc1"
                for i in range(4)]
        ops += ["v_and_b32 v2, 15, v0", "v_lshlrev_b32 v2, 2, v2", "v_mov_b32 v3, 0", "s_lshl_b32 s65, s63, 8",
                f"s_lshl_b32 s66, s{self.sW}, 6", "s_add_u32 s65, s65, s66",
                f"buffer_store_dword v3, v2, s[{self.sIN}:{self.sIN+3}], s65 offen sc0 sc1"]
        return ops

    def slot(self, phase, reads, mfma, need):
        return dict(phase=phase, reads=reads, mfma=mfma, need=need, fa=[], fb=[])

    def qproj_slots(self):
        slots = []
        xphase = {}
        XB = self.S[0]
        for phi in range(10):
            first = len(slots)
            xr = []
            todo = []
            for upper, item in enumerate(self.PH[phi]):
                kind, n = item[0], int(item[1:])
                base = self.slot_addr(phi, upper)
                if kind == "x":
                    for s in range(4):
                        for qq in range(2):
                            a = XB + (n % 2) * 32 + 8 * s + 4 * qq
                            xr.append(((phi, "x", n, s, qq),
                                       f"ds_read_b128 {vr(a)}, v{self.vXA+s} offset:{base+qq*4096}"))
                    xphase[n] = phi
                else:
                    todo += [(upper, n, c) for c in range(8)]
            if phi == 9:
                todo.sort(key=lambda x: (x[2], x[1]))
            for upper, n, c in todo:
                fb = self.fb()
                va = self.vWA + c + 8 * upper
                o = self.slot_addr(phi, upper) % 65536
                tg = [(phi, "w", n, c, g) for g in range(2)]
                reads = [(tg[g], f"ds_read_b64_tr_b16 {ar(fb+2*g, 2)}, v{va} offset:{o+g*4*512}") for g in range(2)]
                ch, s = n // 4, n % 4
                ms = []
                for qq in range(2):
                    d = self.O + 8 * c + 4 * qq
                    a = XB + (ch % 2) * 32 + 8 * s + 4 * qq
                    ms.append(f"{MF} {vr(d)}, {ar(fb)}, {vr(a)}, {'0' if n == 0 else vr(d)}")
                slots.append(self.slot(phi, reads, ms, tg + [(xphase[ch], "x", ch, s, qq) for qq in range(2)]))
            if xr:
                if phi == 0:
                    slots[first]["reads"] = xr[:2] + slots[first]["reads"]
                    xr = xr[2:]
                    first += 2
                for i, r in enumerate(xr):
                    slots[first + i]["reads"].insert(0, r)
        return slots

    def scale4(self, d, sc_scalar=None, sc_v=None):
        if self.o["pk"]:
            src = f"s[{sc_scalar}:{sc_scalar+1}]" if sc_scalar is not None else vr(sc_v, 2)
            return [f"v_pk_mul_f32 {vr(d+2*i, 2)}, {vr(d+2*i, 2)}, {src}" for i in range(2)]
        src = f"s{sc_scalar}" if sc_scalar is not None else f"v{sc_v}"
        return [f"v_mul_f32 v{d+i}, {src}, v{d+i}" for i in range(4)]

    def q_convert(self, ks):
        ops = []
        for T in range(2):
            for qq in range(2):
                q = self.Q + 16 * qq + 4 * ks
                d = self.O + 8 * (2 * ks + T) + 4 * qq
                ops += self.scale4(d, sc_scalar=self.sSC)
                ops.append(f"v_cvt_pk_bf16_f32 v{q+2*T}, v{d}, v{d+1}")
                ops.append(f"v_cvt_pk_bf16_f32 v{q+2*T+1}, v{d+2}, v{d+3}")
        for qq in range(2):
            q = self.Q + 16 * qq + 4 * ks
            ops.append(f"v_permlane16_swap_b32 v{q}, v{q+2}")
            ops.append(f"v_permlane16_swap_b32 v{q+1}, v{q+3}")
        return ops

    def k_slot(self, tau, kt, ks, first_c, base=None):
        phi = 10 + tau // 2
        fb = self.fb()
        tag = (phi, "k", tau, kt, ks)
        o = (self.slot_addr(phi, 0) if base is None else base) + (tau % 2) * 8192 + kt * 4096
        reads = [(tag, f"ds_read_b128 {ar(fb)}, v{self.vKA+ks} offset:{o}")]
        ms = []
        for qq in range(2):
            d = self.S[tau % 2] + 8 * qq + 4 * kt
            C = vr(d) if ks else ("0" if first_c else vr(self.C + 4 * qq))
            ms.append(f"{MF} {vr(d)}, {ar(fb)}, {vr(self.Q+16*qq+4*ks)}, {C}")
        return self.slot(phi, reads, ms, [tag])

    def v_slot(self, tau, dt):
        phi = 11 + tau // 2
        fb = self.fb()
        o = self.slot_addr(phi, 1) % 65536 + (tau % 2) * 8192
        tg = [(phi, "v", tau, dt, g) for g in range(2)]
        reads = [(tg[g], f"ds_read_b64_tr_b16 {ar(fb+2*g, 2)}, v{self.vVA+dt} offset:{o+g*4096}") for g in range(2)]
        ms = []
        for qq in range(2):
            d = self.O + 8 * dt + 4 * qq
            ms.append(f"{MF} {vr(d)}, {ar(fb)}, {vr(self.P[tau % 2]+4*qq)}, {'0' if tau == 0 else vr(d)}")
        return self.slot(phi, reads, ms, tg)

    def sum_mfma(self, tau, qq):
        d = self.LS + 4 * qq
        return f"{MF} {vr(d)}, {vr(self.ONE)}, {vr(self.P[tau % 2]+4*qq)}, {'0' if tau == 0 else vr(d)}"

    def sm_list(self, t, sub):
        r, pw = self.S[t % 2], self.P[t % 2]
        ops = []
        for j in range(18):
            if sub and j < 16:
                ops.append(f"v_sub_f32 v{r+j}, v{r+j}, v{self.vM+j//8}")
            jj = j - 1
            if 0 <= jj < 16:
                ops.append(f"v_exp_f32 v{r+jj}, v{r+jj}")
            if jj >= 2 and jj % 2 == 0:
                ops.append(f"v_cvt_pk_bf16_f32 v{pw+jj//2-1}, v{r+jj-2}, v{r+jj-1}")
        return ops

    def sm_steady(self, it, t):
        r, pw = self.S[t % 2], self.P[t % 2]
        for j in range(16):
            it[j]["fa"].append(f"v_exp_f32 v{r+j}, v{r+j}")
            if j >= 8:
                k = j - 8
                it[j]["fb"].append(f"v_cvt_pk_bf16_f32 v{pw+k}, v{r+2*k}, v{r+2*k+1}")

    def max_ops(self, regs, m, init):
        ops = []
        regs = list(regs)
        cur = init
        while regs:
            if len(regs) >= 2:
                ops.append(f"v_max3_f32 v{m}, v{cur}, v{regs[0]}, v{regs[1]}")
                regs = regs[2:]
            else:
                ops.append(f"v_max_f32 v{m}, v{cur}, v{regs[0]}")
                regs = regs[1:]
            cur = m
        return ops

    def xlane_max(self, m, tmp):
        return [f"v_mov_b32 v{tmp}, v{m}", f"v_permlane32_swap_b32 v{tmp}, v{m}", f"v_max_f32 v{m}, v{m}, v{tmp}",
                f"v_mov_b32 v{tmp}, v{m}", f"v_permlane16_swap_b32 v{tmp}, v{m}", f"v_max_f32 v{m}, v{m}, v{tmp}"]

    def attention_slots(self):
        s0 = [self.k_slot(0, kt, ks, True) for kt in range(2) for ks in range(4)]
        s1 = [self.k_slot(1, kt, ks, False) for kt in range(2) for ks in range(4)]
        a, b = [], []
        for qq, lst in ((0, a), (1, b)):
            r = self.S[0] + 8 * qq
            lst += self.max_ops(range(r, r + 4), self.vM + qq, self.vMP + qq)
            lst += self.xlane_max(self.vM + qq, 1 + qq)
            lst += [f"v_sub_f32 v{self.C+4*qq+i}, 0, v{self.vM+qq}" for i in range(4)]
        ops = [x for p in zip(a, b) for x in p]
        self.spread(s0[5:], ops)
        self.spread(s1, self.sm_list(0, True), 3, 2)
        slots = s0 + s1
        for t in range(1, 31):
            it = [self.k_slot(t + 1, kt, ks, False) for kt in range(2) for ks in range(4)]
            it += [self.v_slot(t - 1, dt) for dt in range(8)]
            self.sm_steady(it, t)
            for qq in range(2):
                it[(3, 7)[qq]]["mfma"].append(self.sum_mfma(t - 1, qq))
            slots += it
        it = [self.v_slot(30, dt) for dt in range(8)]
        self.spread(it[:7], self.sm_list(31, False))
        for qq in range(2):
            it[qq]["mfma"].append(self.sum_mfma(30, qq))
            it[7]["mfma"].append(self.sum_mfma(31, qq))
        slots += it
        slots += [self.v_slot(31, dt) for dt in range(8)]
        return slots

    def o_convert(self, f):
        ops = []
        for qq in range(2):
            pk = self.S[0] + 8 * f + 4 * qq
            for T in range(2):
                r = self.O + 8 * (2 * f + T) + 4 * qq
                ops += self.scale4(r, sc_v=2 + 2 * qq)
                ops.append(f"v_cvt_pk_bf16_f32 v{pk+2*T}, v{r}, v{r+1}")
                ops.append(f"v_cvt_pk_bf16_f32 v{pk+2*T+1}, v{r+2}, v{r+3}")
            if f == 0 and qq == 0:
                ops.append(f"v_min_u32 v{pk}, -2, v{pk}")

            def wr(pk=pk, qq=qq):
                self.e(f"ds_write_b128 v{self.vEXW}, {vr(pk)} offset:{(2*f+qq)*1024}")
                self.lg.push((96, "ow"))
            ops.append(wr)
        return ops

    def oacc(self, blk):
        return [self.C, self.C + 16, self.O, self.O + 16][blk % 4]

    def outproj_slots(self):
        slots = []
        parts = [(blk, oth) for blk in range(8) for oth in range(2)]
        self.blk_end = {}
        for blk, oth in parts:
            phi = 27 + blk
            for f in range(4):
                for c in range(2):
                    fb = self.fb()
                    o = self.slot_addr(phi, 0) + f * 4096
                    tg = [(phi, "o", oth, f, c, g) for g in range(2)]
                    reads = [(tg[g], f"ds_read_b64_tr_b16 {ar(fb+2*g, 2)}, v{self.vOA+2*oth+c} offset:{o+g*2048}")
                             for g in range(2)]
                    need = list(tg)
                    ms = []
                    for qq in range(2):
                        if oth:
                            bq = self.Q + 8 * f + 4 * qq
                            need.append((97, "of", f, qq))
                            if blk == 0 and c == 0:
                                reads.insert(0, ((97, "of", f, qq),
                                                 f"ds_read_b128 {vr(bq)}, v{self.vEXR} offset:{(2*f+qq)*1024}"))
                        else:
                            bq = self.S[0] + 8 * f + 4 * qq
                        d = self.oacc(blk) + 8 * qq + 4 * c
                        C = "0" if (oth == 0 and f == 0) else vr(d)
                        ms.append(f"{MF} {vr(d)}, {ar(fb)}, {vr(bq)}, {C}")
                    sl = self.slot(phi, reads, ms, need)
                    if blk == 0 and oth:
                        sl["gate"] = "X"
                    slots.append(sl)
            self.blk_end[blk] = len(slots)
        return slots

    def store_ops(self, blk):
        ops = []
        for qq in range(2):
            d = self.oacc(blk) + 8 * qq
            pk = self.O + 32 + (blk % 4) * 8 + 4 * qq
            ops.append(f"s_mov_b32 s{self.sT+qq}, {blk*131072+qq*16384}")
            for i in range(4):
                ops.append(f"v_cvt_pk_bf16_f32 v{pk+i}, v{d+2*i}, v{d+2*i+1}")
            if blk >= 6 and self.o["tail"] == "sent":
                for i in range(4):
                    ops.append(f"v_min_u32 v{pk+i}, -2, v{pk+i}")

            def st(pk=pk, qq=qq):
                self.e(f"buffer_store_dwordx4 {vr(pk)}, v{self.vST}, s[{self.sWS}:{self.sWS+3}], s{self.sT+qq} offen {self.o.get('st_flags', '' if self.o['tail'] == 'two' else 'sc1')}")
                self.vm.push(blk)
            ops.append(st)
        return ops

    def ack_op(self, pr):
        def f():
            self.vm.need(lambda t: t <= 2 * pr + 1)
            self.e("s_mov_b64 exec, 15")
            self.e(f"buffer_store_dwordx2 v[4:5], v6, s[{self.sIN}:{self.sIN+3}], s55 offen offset:{128*pr} sc0 sc1")
            self.e("s_mov_b64 exec, -1")
            self.vm.push(99)
        return f

    def compute(self):
        e = self.e
        self.fbi = 0
        self.setup()
        if self.stamps:
            e(f"v_mov_b32 v{self.vS1}, 0")
            e(f"v_mov_b32 v{self.vS2}, 0")
            e(f"v_writelane_b32 v{self.vS1}, s70, 0")
        self.stamp("setup")
        qs = self.qproj_slots()
        at = self.attention_slots()
        os_ = self.outproj_slots()
        nq, na = len(qs), len(at)
        self.spread(qs[-11:-7], self.q_convert(0), 3, 1)
        self.spread(qs[-7:-3], self.q_convert(1), 3, 1)
        self.spread(qs[-3:], self.q_convert(2), 3, 1)
        self.spread(at[0:3], self.q_convert(3), 3, 2)
        self.spread(at[3:5], [f"v_xor_b32 v{self.vVA+d}, {d*32}, v{self.vT}" for d in range(8)])
        self.spread(qs[-24:-20], [f"v_xor_b32 v{self.vOA+2*o+c}, {o*65536+c*32}, v{self.vT+1}"
                                  for o in range(2) for c in range(2)], 1, 0)

        sp = self.o.get("sentpos", 48)
        T = self.o["tail"]
        assert T in ("two", "flag")
        at[4]["fb"].append("s_waitcnt vmcnt(0)")

        def re_label(slots, g, nxt):
            self.re_reads = [r for s in slots[g:nxt] for r in s["reads"]]
            assert all(s["phase"] == 10 for s in slots[g:nxt])
            e("L_re_compute:")
        at[5]["label"] = re_label
        L0, L1 = self.LS, self.LS + 4

        def vote():
            e("s_cmp_lg_u64 s[98:99], 0")
            e(f"s_cselect_b32 s52, s{self.sMODE}, 0")
            e("v_mov_b32 v1, s52")
            e(f"ds_write_b32 v{self.vFL}, v1")
            self.lg.push((96, "vote"))
        self.spread(at[-7:-5], [f"v_rcp_f32 v2, v{L0}", f"v_rcp_f32 v4, v{L1}", f"v_add_f32 v1, v{L0}, v{L1}",
                                "v_mov_b32 v3, v2", "v_mov_b32 v5, v4",
                                "v_cmp_nlt_f32 s[98:99], v1, s79"])
        at[-5]["fb"].append(vote)
        self.spread(at[-4:-2], self.o_convert(0), 2, 1)
        self.spread(at[-2:], self.o_convert(1), 2, 1)
        self.spread(os_[0:3], self.o_convert(2), 2, 1)
        self.spread(os_[3:5], self.o_convert(3), 2, 1)

        def vote_read():
            e(f"v_and_b32 v1, {~1023 & 0xffffffff}, v{self.vEXW}")
            e(f"ds_read_b128 {vr(self.S[1]+12)}, v1 offset:7168")
            self.lg.push((95, "vr"))
        os_[0]["afterbar"] = [vote_read]
        os_[0]["notbefore"] = nq + na - 5

        def vote_check():
            self.lg.need(lambda t: t == (95, "vr"))
            r = self.S[1] + 12
            e(f"v_or3_b32 v1, v{r}, v{r+1}, v{r+2}")
            e(f"v_or_b32 v1, v1, v{r+3}")
            e("v_readfirstlane_b32 s52, v1")
            e("s_cmp_lg_u32 s52, 0")
            e("s_cbranch_scc1 L_safe_compute")
        os_[0]["fb"].append(vote_check)
        os_[8]["notbefore"] = nq + na + self.o.get("xpos", 4)
        os_[9]["fa"] += ["v_and_b32 v6, 1, v0", "v_bfe_u32 v1, v0, 1, 1"]
        os_[10]["fa"] += ["v_lshl_add_u32 v6, v1, 3, v6", "v_mov_b32 v7, 1"]
        os_[11]["fa"] += ["v_lshlrev_b32 v6, 9, v6", f"s_lshl_b32 s55, s{self.sW}, 10"]
        os_[12]["fa"] += ["s_lshl_b32 s52, s63, 3", "s_add_u32 s55, s55, s52"]
        AD = self.o["ackdist"]
        late = []
        for blk in range(7):
            j = max(self.blk_end[blk], self.o.get("stdelay", 0) + 4 * blk)
            self.spread(os_[j + 2:j + 6], self.store_ops(blk), 2, 1)
        self.ack_at = {}
        if T != "two":
            self.ack_at = {self.o.get("ack0", 32): [0], self.o.get("ack1", 34): [1]}
            late = [2]
        at[-1]["fb"].append(lambda: self.stamp("attn", 1))
        self.run_slots(qs + at + os_)
        for op in self.store_ops(7):
            self.emit_fill(op)
        self.stamp("outproj", 1)
        if T != "two":
            self.compute_tail(late)
        if self.stamps:
            e("s_waitcnt vmcnt(0)")
            self.stamp("drain", 1)
            e("s_add_u32 s44, s18, 0x2000000")
            e("s_addc_u32 s45, s19, 0")
            e("s_mov_b32 s46, 0x4000000")
            e("s_mov_b32 s47, 0x20000")
            e("s_mul_i32 s65, s2, 4")
            e(f"s_add_u32 s65, s65, s{self.sW}")
            e("s_mul_i32 s65, s65, 512")
            e("v_lshlrev_b32 v1, 2, v0")
            e("s_getreg_b32 s66, hwreg(HW_REG_XCC_ID)")
            e(f"v_writelane_b32 v{self.vS1}, s66, 63")
            e(f"v_writelane_b32 v{self.vS2}, s67, 63")
            e(f"buffer_store_dword v{self.vS1}, v1, s[44:47], s65 offen")
            e(f"buffer_store_dword v{self.vS2}, v1, s[44:47], s65 offen offset:256")
        e("s_endpgm")
        e("L_safe_compute:")
        e(f"v_mov_b32 v1, {self.EX}")
        e("v_mov_b32 v2, -1")
        e("ds_write_b32 v1, v2")
        e("s_waitcnt lgkmcnt(0)")
        e("s_barrier")
        e("s_barrier")
        e(f"s_mov_b32 s{self.sMODE}, 0")
        e("s_mov_b32 s67, 0")
        e("L_safe_c_loop:")
        e("s_barrier")
        for tau in range(2):
            self.fbi = 0
            ks_ = [self.k_slot(tau, kt, ks, True, base=0) for kt in range(2) for ks in range(4)]
            for s in ks_:
                e(s["reads"][0][1])
            e("s_waitcnt lgkmcnt(0)")
            for s in ks_:
                e(s["mfma"][0])
                e(s["mfma"][1])
            e("s_nop 7")
        e("s_barrier")
        for qq in range(2):
            regs = [self.S[tau] + 8 * qq + i for tau in range(2) for i in range(8)]
            for op in self.max_ops(regs, self.vMP + qq, self.vMP + qq):
                e(op)
        e("s_add_u32 s67, s67, 1")
        e("s_cmp_lt_u32 s67, 16")
        e("s_cbranch_scc1 L_safe_c_loop")
        e("s_barrier")
        self.fbi = 0
        ks_ = [self.k_slot(0, kt, ks, True) for kt in range(2) for ks in range(4)][:5]
        for s in ks_:
            e(s["reads"][0][1])
        e("s_waitcnt lgkmcnt(0)")
        for s in ks_:
            e(s["mfma"][0])
            e(s["mfma"][1])
        e("s_nop 7")
        for tag, text in self.re_reads:
            e(text)
        e("s_waitcnt lgkmcnt(0)")
        e("s_branch L_re_compute")

    def compute_tail(self, late):
        e = self.e
        e("s_memrealtime s[72:73]")
        e("s_lshl_b32 s65, s63, 14")
        e(f"s_lshl_b32 s67, s{self.sW}, 8")
        e("s_add_u32 s65, s65, s67")
        e(f"s_add_u32 s65, s65, {3 << 18}")
        for i in range(1, 4):
            e(f"s_add_u32 s{43+i}, s65, {i*4096}")
        e("v_lshlrev_b32 v1, 2, v0")
        e("v_lshrrev_b32 v2, 2, v0")
        e("v_lshlrev_b32 v2, 10, v2")
        e("v_bfe_u32 v3, v0, 1, 1")
        e("v_lshl_add_u32 v2, v3, 5, v2")
        e("v_and_b32 v3, 1, v0")
        e("v_lshl_add_u32 v2, v3, 2, v2")
        self.unit_offset("3", "s47")
        e(f"s_lshl_b32 s52, s{self.sW}, 3")
        e("s_add_u32 s47, s47, s52")
        e("s_mov_b32 s66, 0xffff0000")
        e("s_waitcnt lgkmcnt(0)")
        self.lg.q = []
        e("v_mov_b32 v4, s72")
        e("v_mov_b32 v5, s73")
        for pr in late:
            self.ack_op(pr)()
        self.stamp("acked", 1)
        if self.o["tail"] == "flag":
            self.ack_op(3)()
            e("s_lshl_b32 s52, s63, 9")
            e("s_add_u32 s52, s52, 384")
            self.poll("L_poll_f", "s52", 3, 8)
            self.stamp("polled", 1)
        e("s_mov_b32 s67, 0")
        e("L_poll_c:")
        for i in range(16):
            so = "s65" if i < 4 else f"s{43+i//4}"
            e(f"buffer_load_dword v{48+i}, v1, s[{self.sRD}:{self.sRD+3}], {so} offen offset:{(i%4)*1024} sc1")
        e("s_add_u32 s67, s67, 1")
        for i in range(0, 16, 2):
            e(f"s_waitcnt vmcnt({14-i})")
            if i == 0:
                e("v_max_u32 v3, v48, v49")
                e("v_lshlrev_b32 v4, 16, v48")
                e("v_and_b32 v5, s66, v48")
            else:
                e(f"v_max3_u32 v3, v3, v{48+i}, v{49+i}")
            for k in ((1,) if i == 0 else (i, i + 1)):
                e(f"v_lshlrev_b32 v6, 16, v{48+k}")
                e(f"v_and_b32 v7, s66, v{48+k}")
                e("v_add_f32 v4, v4, v6")
                e("v_add_f32 v5, v5, v7")
        e("v_cmp_eq_u32 vcc, -1, v3")
        e("s_cmp_gt_u32 s67, 0x40000")
        e("s_cbranch_scc1 L_poll_c_done")
        e("s_nop 3")
        if self.o["tail"] == "sent":
            e("s_cbranch_vccnz L_poll_c")
        e("L_poll_c_done:")
        e("v_cvt_pk_bf16_f32 v4, v4, v5")
        e(f"buffer_store_dword v4, v2, s[{self.sOUT}:{self.sOUT+3}], s47 offen")
        self.stamp("reduced", 1)

    def main_kernel(self):
        self.events = []
        self.compute()
        comp = self.L
        self.L = []
        self.prologue()
        self.loader()
        self.L += comp
        self.e("L_code_end:")
        return hazard_pass(self.L)


RN = "gqa_reduce_kernel"


def reduce_kernel(flags=""):
    L = []
    e = lambda s: L.append(s if s.endswith(":") else "    " + s)
    e("s_cmp_ge_u32 s2, 256")
    e("s_cbranch_scc1 R_end")
    e("s_load_dwordx2 s[4:5], s[0:1], 40")
    e("s_load_dwordx2 s[6:7], s[0:1], 56")
    e("v_lshrrev_b32 v1, 6, v0")
    e("v_and_b32 v0, 63, v0")
    e("v_readfirstlane_b32 s3, v1")
    e("v_lshlrev_b32 v1, 4, v0")
    e("s_lshr_b32 s16, s2, 4")
    e("s_and_b32 s17, s2, 15")
    e("s_lshl_b32 s18, s16, 20")
    e("s_lshl_b32 s19, s17, 14")
    e("s_add_u32 s18, s18, s19")
    e("s_lshl_b32 s19, s3, 18")
    e("s_add_u32 s18, s18, s19")
    e("s_waitcnt lgkmcnt(0)")
    e("s_add_u32 s8, s6, s18")
    e("s_addc_u32 s9, s7, 0")
    e("s_mov_b32 s10, 16384")
    e("s_mov_b32 s11, 0x20000")
    for i in range(16):
        if i % 4 == 0:
            e(f"s_mov_b32 s20, {(i//4)*4096}")
        e(f"buffer_load_dwordx4 {vr(32+4*i)}, v1, s[8:11], s20 offen offset:{(i%4)*1024} {flags}")
    e("s_mov_b32 s12, s4")
    e("s_mov_b32 s13, s5")
    e("s_mov_b32 s14, 1048576")
    e("s_mov_b32 s15, 0x20000")
    e("v_and_b32 v2, 15, v0")
    e("v_lshlrev_b32 v2, 10, v2")
    e("v_bfe_u32 v3, v0, 4, 1")
    e("v_lshl_add_u32 v2, v3, 5, v2")
    e("v_bfe_u32 v3, v0, 5, 1")
    e("v_lshl_add_u32 v2, v3, 4, v2")
    e("s_lshl_b32 s21, s3, 1")
    e("s_lshr_b32 s22, s17, 3")
    e("s_add_u32 s21, s21, s22")
    e("s_and_b32 s22, s16, 7")
    e("s_xor_b32 s21, s21, s22")
    e("s_lshl_b32 s21, s21, 7")
    e("s_bfe_u32 s22, s17, 0x10002")
    e("s_lshl_b32 s22, s22, 6")
    e("s_add_u32 s21, s21, s22")
    e("s_and_b32 s22, s17, 3")
    e("s_lshl_b32 s22, s22, 14")
    e("s_add_u32 s21, s21, s22")
    e("s_lshl_b32 s22, s16, 16")
    e("s_add_u32 s21, s21, s22")
    e("s_mov_b32 s19, 0xffff0000")
    for i in range(16):
        e(f"s_waitcnt vmcnt({15-i})")
        for k in range(4):
            r = 32 + 4 * i + k
            if i == 0:
                e(f"v_lshlrev_b32 v{8+2*k}, 16, v{r}")
                e(f"v_and_b32 v{9+2*k}, s19, v{r}")
            else:
                e(f"v_lshlrev_b32 v16, 16, v{r}")
                e(f"v_and_b32 v17, s19, v{r}")
                e(f"v_add_f32 v{8+2*k}, v{8+2*k}, v16")
                e(f"v_add_f32 v{9+2*k}, v{9+2*k}, v17")
    for k in range(4):
        e(f"v_cvt_pk_bf16_f32 v{16+k}, v{8+2*k}, v{9+2*k}")
    e("v_permlane16_swap_b32 v16, v18")
    e("v_permlane16_swap_b32 v17, v19")
    e("buffer_store_dwordx4 v[16:19], v2, s[12:15], s21 offen")
    e("R_end:")
    e("s_endpgm")
    return hazard_pass(L)[0]


def kd(name, vgpr, accum, sgpr=102):
    return f""".amdhsa_kernel {name}
  .amdhsa_next_free_vgpr {vgpr}
  .amdhsa_next_free_sgpr {sgpr}
  .amdhsa_accum_offset {accum}
  .amdhsa_group_segment_fixed_size 0
  .amdhsa_kernarg_size 64
  .amdhsa_user_sgpr_count 2
  .amdhsa_user_sgpr_kernarg_segment_ptr 1
  .amdhsa_system_sgpr_workgroup_id_x 1
.end_amdhsa_kernel
"""


def build(stamps=0, opts=None):
    g = Gen(stamps, opts)
    body, added = g.main_kernel()
    txt = HEADER
    two = g.o["tail"] == "two"
    if two:
        txt += f"; @launch kernel={KN} grid=(256,1,1) block=(512,1,1) lds=163840\n"
        txt += f"; @launch kernel={RN} grid=(256,1,1) block=(256,1,1) lds=0\n"
    else:
        txt += "; @launch grid=(256,1,1) block=(512,1,1) lds=163840\n"
    txt += '.amdgcn_target "amdgcn-amd-amdhsa--gfx950"\n.text\n'
    txt += f".globl {KN}\n.p2align 8\n.type {KN},@function\n{KN}:\n" + "\n".join(body[:-1]) + "\n"
    if two:
        txt += f".globl {RN}\n.p2align 8\n.type {RN},@function\n{RN}:\n"
        txt += "\n".join(reduce_kernel(g.o.get("red_flags", "").replace("+", " "))) + "\n"
    txt += body[-1] + "\n"
    txt += '.section .rodata,"a"\n.p2align 6\n' + kd(KN, 256, g.ACC)
    if two:
        txt += ".p2align 6\n" + kd(RN, 96, 96, 32)
    txt += "; stamps: " + " ".join(g.stamp_names) + "\n"
    return txt, added


if __name__ == "__main__":
    import argparse
    ap = argparse.ArgumentParser()
    ap.add_argument("out")
    ap.add_argument("--stamps", type=int, default=0)
    ap.add_argument("--opt", action="append", default=[])
    a = ap.parse_args()
    opts = {}
    for o in a.opt:
        k, v = o.split("=")
        try:
            opts[k] = int(v)
        except ValueError:
            try:
                opts[k] = float(v)
            except ValueError:
                opts[k] = v
    txt, added = build(a.stamps, opts)
    open(a.out, "w").write(txt)
    print("wrote", a.out, "lines", txt.count("\n"), "nop states added", added)
```

```python
import math
import struct
from asmlib import hazard_pass, Queue

KN = "standalone__gqa_block_cached__near_ridge_kernel"
HEADER = """; Kernarg layout for this problem (64 bytes, ptrs only, base s[0:1]):
"""


def f32(x):
    return "0x%08x" % struct.unpack("<I", struct.pack("<f", x))[0]


MF = "v_mfma_f32_16x16x32_bf16"


def vr(a, n=4):
    return f"v[{a}:{a+n-1}]"


def ar(a, n=4):
    return f"a[{a}:{a+n-1}]"


class Gen:
    def __init__(self, stamps=0, opts=None):
        self.stamps = stamps
        self.o = dict(DMAX=10, BOFF=6, RPG=2, WG=4, kv_flags="nt", w_flags="", o_flags="", x_flags="", prio=1,
                      d2=3, thresh=2.0 ** 60, ackdist=60, cpf=1, pk=1, tail="flag")
        self.o.update(opts or {})
        self.L = []
        self.lg = Queue("lgkmcnt", 15, self.e)
        self.vm = Queue("vmcnt", 63, self.e)
        self.nstamp = 0
        self.stamp_names = ["start"]
        self.vKA, self.vXA = 8, 12
        self.vOA = 12
        self.vWA = 16
        self.vVA = 16
        self.vST, self.vEXW, self.vEXR, self.vFL = 32, 33, 34, 35
        self.vM, self.vMP = 36, 38
        self.vS1, self.vS2 = 40, 41
        self.vT = 42
        self.ONE = 44
        b = 48
        self.S = [b, b + 16]
        self.C = b + 32
        self.P = [b + 40, b + 48]
        self.LS = b + 56
        self.O = b + 64
        self.Q = b + 128
        self.ACC = b + 160
        self.NFB = 12
        self.sX, self.sWQ, self.sK, self.sV, self.sWO, self.sWS = 20, 24, 28, 32, 36, 40
        self.sDBG, self.sOUT, self.sRD, self.sIN = 80, 84, 88, 92
        self.sW = 3
        self.sT = 53
        self.sRW, self.sRX, self.sRO = 56, 57, 58
        self.sMODE = 78
        self.sSC = 96
        self.EX = 131072
        self.FF = self.o.get('ff', 'sc0+sc1').replace('+', ' ')
        self.PH = self.phases()
        self.NPH = len(self.PH)

    def e(self, s):
        self.L.append(s if s.startswith("    ") or s.endswith(":") else "    " + s)

    def slot_addr(self, phi, upper):
        return (65536 if upper else 0) + (phi % 4) * 16384

    def stamp(self, name="", level=1):
        if not self.stamps or level > self.stamps:
            return
        i = self.nstamp
        self.nstamp += 1
        assert i < 61
        self.stamp_names.append(name)
        self.lg.drain()
        self.e("s_memrealtime s[72:73]")
        self.e("s_memtime s[74:75]")
        self.e("s_waitcnt lgkmcnt(0)")
        self.e(f"v_writelane_b32 v{self.vS1}, s72, {i+1}")
        self.e(f"v_writelane_b32 v{self.vS2}, s74, {i+1}")

    def phases(self):
        ph = [("x0", "w0"), ("x1", "w1"), ("w2", "w3"), ("w4", "w5"), ("x2", "w6"), ("w7", "w8"),
              ("w9", "w10"), ("x3", "w11"), ("w12", "w13"), ("w14", "w15"), ("K0", None)]
        for j in range(1, 16):
            ph.append((f"K{j}", f"V{j-1}"))
        ph.append((None, "V15"))
        for blk in range(8):
            ph.append((f"o{blk}", f"o{blk+8}"))
        return ph

    def prologue(self):
        e = self.e
        e("s_cmp_ge_u32 s2, 256")
        e("s_cbranch_scc1 L_end")
        e("s_memrealtime s[70:71]")
        e("s_load_dwordx16 s[4:19], s[0:1], 0")
        e("v_lshrrev_b32 v1, 6, v0")
        e("v_and_b32 v0, 63, v0")
        e(f"v_readfirstlane_b32 s{self.sW}, v1")
        e("s_and_b32 s60, s2, 7")
        e("s_lshr_b32 s61, s2, 4")
        e("s_bfe_u32 s62, s2, 0x10003")
        e("s_lshl_b32 s63, s60, 1")
        e("s_add_u32 s63, s63, s62")
        e("s_and_b32 s68, s61, 3")
        e(f"s_cmp_lt_u32 s{self.sW}, 4")
        e("s_cbranch_scc1 L_compute")

    def srd(self, s, lo, off_s, shift, nrec):
        e = self.e
        if off_s is None:
            e(f"s_mov_b32 s{s}, s{lo}")
            e(f"s_mov_b32 s{s+1}, s{lo+1}")
        else:
            e(f"s_lshl_b32 s66, s{off_s}, {shift}")
            e(f"s_add_u32 s{s}, s{lo}, s66")
            e(f"s_addc_u32 s{s+1}, s{lo+1}, 0")
        e(f"s_mov_b32 s{s+2}, {nrec}")
        e(f"s_mov_b32 s{s+3}, 0x20000")

    def tail_srds(self, loader):
        e = self.e
        self.srd(self.sRD, 18, 61, 20, 1 << 20)
        self.srd(self.sOUT, 14, 61, 16, 65536)
        if True:
            e("s_lshl_b32 s66, s61, 13")
            e("s_add_u32 s66, s66, 0x1000000")
            e(f"s_add_u32 s{self.sIN}, s18, s66")
            e(f"s_addc_u32 s{self.sIN+1}, s19, 0")
            e(f"s_mov_b32 s{self.sIN+2}, 8192")
            e(f"s_mov_b32 s{self.sIN+3}, 0x20000")

    def dma_half(self, phi, upper, hsel, base=None, so_reg=None):
        item = self.PH[phi][upper]
        if item is None:
            return
        e = self.e
        kind, n = item[0], int(item[1:])
        if base is None:
            base = self.slot_addr(phi, upper)
        if kind == "x":
            srd, vo, so, rs, hs, fl = self.sX, [8, 9], n * 256, self.sRX, 32768, "x_flags"
        elif kind == "w":
            srd, vo, so, rs, hs, fl = self.sWQ, [10, 11], n * 32 * 8192, self.sRW, 16 * 8192, "w_flags"
        elif kind == "K":
            srd, vo, so, rs, hs, fl = self.sK, [12, 13], n * 16384, None, 8192, "kv_flags"
        elif kind == "V":
            srd, vo, so, rs, hs, fl = self.sV, [14, 15], n * 16384, None, 8192, "kv_flags"
        else:
            srd, vo, so, rs, hs, fl = self.sWO, [16, 17], (n // 8) * 131072 + (n % 8) * 128, self.sRO, 65536, "o_flags"
        fl = self.o[fl].replace("+", " ")
        st = self.sT
        if rs is None:
            e(f"s_add_u32 m0, s{46+hsel}, {base}")
            e(f"s_add_u32 s{st}, s{44+hsel}, {so if so_reg is None else so_reg}")
        else:
            e(f"s_add_u32 m0, s48, {base+hsel*8192}")
            e(f"s_xor_b32 s{st}, s{rs}, {so+hsel*hs}")
        e(f"buffer_load_dwordx4 v{vo[0]}, s[{srd}:{srd+3}], s{st} offen {fl} lds")
        e(f"buffer_load_dwordx4 v{vo[1]}, s[{srd}:{srd+3}], s{st} offen offset:1024 {fl} lds")
        self.vm.push(phi)
        self.vm.push(phi)

    def dma_phase(self, phi):
        kv = 10 <= phi <= 26
        for a in range(2):
            for b in range(2):
                self.dma_half(phi, *((b, a) if kv else (a, b)))

    def unit_offset(self, spair, sdst):
        e = self.e
        e(f"s_lshl_b32 {sdst}, {spair}, 1")
        e("s_lshr_b32 s52, s63, 3")
        e(f"s_add_u32 {sdst}, {sdst}, s52")
        e("s_and_b32 s52, s61, 7")
        e(f"s_xor_b32 {sdst}, {sdst}, s52")
        e(f"s_lshl_b32 {sdst}, {sdst}, 7")
        e("s_bfe_u32 s52, s63, 0x10002")
        e("s_lshl_b32 s52, s52, 6")
        e(f"s_add_u32 {sdst}, {sdst}, s52")
        e("s_and_b32 s52, s63, 3")
        e("s_lshl_b32 s52, s52, 14")
        e(f"s_add_u32 {sdst}, {sdst}, s52")

    def loader(self):
        e = self.e
        self.vm.q = []
        e("s_lshr_b32 s69, s61, 2")
        e("s_and_b32 s76, s60, 3")
        e("s_lshl_b32 s77, s62, 1")
        e("s_xor_b32 s76, s76, s77")
        e("s_xor_b32 s77, s76, s69")
        e("s_lshl_b32 s76, s76, 2")
        e("s_xor_b32 s76, s76, s61")
        e(f"s_sub_u32 s49, s{self.sW}, 4")
        e("s_lshl_b32 s48, s49, 11")
        e(f"s_lshl_b32 s{self.sRW}, s76, 18")
        e(f"s_lshl_b32 s{self.sRX}, s77, 8")
        e("v_lshrrev_b32 v2, 4, v0")
        e("v_and_b32 v3, 15, v0")
        e("v_lshrrev_b32 v4, 5, v0")
        e("v_and_b32 v5, 31, v0")
        e("s_and_b32 s65, s49, 1")
        e("s_lshl_b32 s65, s65, 3")
        e("v_or_b32 v6, s65, v2")
        e("v_xor_b32 v6, v6, v3")
        e("v_lshlrev_b32 v6, 4, v6")
        e("s_lshl_b32 s65, s49, 3")
        e("v_add_u32 v7, s65, v2")
        e("v_lshl_add_u32 v8, v7, 10, v6")
        e("v_xor_b32 v9, 64, v8")
        e("v_add_u32 v9, 3072, v9")
        e("s_lshl_b32 s65, s49, 2")
        e("v_add_u32 v18, s65, v4")
        e("s_lshr_b32 s65, s49, 1")
        e("s_lshl_b32 s65, s65, 3")
        e("v_lshl_or_b32 v19, v4, 1, s65")
        e("v_xor_b32 v19, v19, v5")
        e("v_lshlrev_b32 v19, 4, v19")
        e("v_lshl_add_u32 v10, v18, 13, v19")
        e("v_xor_b32 v11, 64, v10")
        e(f"v_add_u32 v11, {16384-1024}, v11")
        e("s_waitcnt lgkmcnt(0)")
        self.srd(self.sX, 4, 61, 16, 65536)
        self.srd(self.sWQ, 10, 63, 9, 511 * 8192 + 512)
        self.dma_phase(0)
        e("s_lshl_b32 s64, s61, 3")
        e("s_add_u32 s64, s64, s60")
        self.srd(self.sK, 6, 64, 18, 262144)
        self.srd(self.sV, 8, 64, 18, 262144)
        self.srd(self.sWO, 12, 63, 18, 262144)
        e("v_lshl_add_u32 v12, v7, 8, v6")
        e("v_xor_b32 v13, 64, v12")
        e("v_lshlrev_b32 v18, 1, v2")
        e("v_xor_b32 v19, v18, v3")
        e("v_lshlrev_b32 v19, 4, v19")
        e("v_lshl_add_u32 v14, v7, 8, v19")
        e("v_xor_b32 v15, 128, v14")
        e("v_and_b32 v19, 7, v0")
        e("v_xor_b32 v19, v19, v18")
        e("v_lshlrev_b32 v19, 4, v19")
        e("v_lshrrev_b32 v18, 3, v0")
        e("s_lshl_b32 s65, s49, 4")
        e("v_add_u32 v18, s65, v18")
        e("v_lshl_add_u32 v16, v18, 10, v19")
        e(f"v_add_u32 v17, {8192-1024}, v16")
        e("s_lshr_b32 s65, s61, 3")
        e("s_lshl_b32 s65, s65, 17")
        e("s_and_b32 s66, s61, 7")
        e("s_lshl_b32 s66, s66, 7")
        e(f"s_or_b32 s{self.sRO}, s65, s66")
        e("s_lshl_b32 s44, s62, 13")
        e("s_xor_b32 s45, s44, 8192")
        e("s_add_u32 s46, s44, s48")
        e("s_add_u32 s47, s45, s48")
        self.dma_phase(1)
        self.tail_srds(True)
        e(f"v_mov_b32 v21, {self.EX}")
        e("v_lshlrev_b32 v20, 4, v0")
        d2 = self.o["d2"]
        CHK = 24
        items = [(p, u) for p in range(2, self.NPH) for u in range(2) if self.PH[p][u] is not None]
        SG = self.o.get("stage", 99)
        staged = [(p, u, h) for p in range(SG, self.NPH) for u in range(2) for h in range(2)]
        if self.o.get("stage30", 1) and SG == 31 and self.o.get("quiet", 1):
            staged = [(30, 1, 0), (30, 1, 1)] + staged
        sreg = {x: 32 + 8 * i for i, x in enumerate(staged)}
        to_load = list(staged)
        e("v_lshlrev_b32 v26, 4, v0")
        e("v_add_u32 v26, s48, v26")
        e("v_add_u32 v27, 65536, v26")
        done = []
        freed = set()
        opened = -1
        lvl = 0
        wrote = False
        for gate, frees, acks in self.events:
            if gate == 27 and self.o.get("quiet", 1):
                self.vm.drain()
            if gate != "X":
                assert all(p > gate for p, u in items)
                self.vm.need(lambda t: t <= gate)
                opened = max(opened, gate)
            if wrote:
                e("s_waitcnt lgkmcnt(0)")
                wrote = False
            e("s_barrier")
            freed |= set(frees)
            if gate == "X":
                e("ds_read_b32 v4, v21")
                e("s_waitcnt lgkmcnt(0)")
                e("v_readfirstlane_b32 s65, v4")
                e("s_cmp_eq_u32 s65, -1")
                e("s_cbranch_scc1 L_safe_loader")
            for pr in acks:
                assert pr == lvl
                lvl += 1
                e("s_cmp_lg_u32 s49, 3")
                e(f"s_cbranch_scc1 L_nopub{pr}")
                e("s_memrealtime s[72:73]")
                e("s_lshl_b32 s65, s63, 3")
                e("v_lshlrev_b32 v2, 9, v0")
                e("s_waitcnt lgkmcnt(0)")
                e("v_mov_b32 v4, s72")
                e("v_mov_b32 v5, s73")
                e("s_mov_b64 exec, 0xffff")
                e(f"buffer_store_dwordx2 v[4:5], v2, s[{self.sIN}:{self.sIN+3}], s65 offen offset:{128*pr} {self.FF}")
                e("s_mov_b64 exec, -1")
                e(f"L_nopub{pr}:")
            self.lvl0 = lvl
            dist = 2 if opened < d2 else 3
            n0 = len(self.vm.q)
            batch = []
            quiet = gate == 27 and self.o.get("quiet", 1)
            while items and not quiet:
                p, u = items[0]
                prev = p - 4 if (p < 4 or self.PH[p - 4][u] is not None) else p - 8
                ok = (p < 4 or prev in freed) and p <= opened + dist + (1 if prev == p - 8 else 0)
                if opened >= 27 and len(batch) >= self.o.get("oquota", 3) and p > opened + 2:
                    ok = False
                if opened < 10 and len(batch) >= self.o.get("qquota", 9) and p > opened + 2:
                    ok = False
                if not ok:
                    break
                batch.append(items.pop(0))
            for p in sorted(set(p for p, u in batch)):
                us = [u for pp, u in batch if pp == p]
                if 10 <= p <= 26:
                    seq = [(u, h) for h in range(2) for u in us]
                else:
                    seq = [(u, h) for u in us for h in range(2)]
                for u, h in seq:
                    if (p, u, h) in sreg:
                        r = sreg[(p, u, h)]
                        self.vm.need(lambda t: t == 1000 + r)
                        for i in range(2):
                            e(f"ds_write_b128 v{26+u}, {vr(r+4*i)} offset:{self.slot_addr(p, 0)+h*8192+i*1024}")
                        wrote = True
                    else:
                        self.dma_half(p, u, h)
            if gate != "X" and self.o.get("stfrom", 12) <= gate:
                for _ in range(self.o.get("strate", 2)):
                    if to_load:
                        p, u, h = x = to_load.pop(0)
                        n = int(self.PH[p][u][1:])
                        r = sreg[x]
                        fl = self.o["o_flags"].replace("+", " ")
                        e(f"s_xor_b32 s{self.sT}, s{self.sRO}, {(n // 8) * 131072 + (n % 8) * 128 + h * 65536}")
                        e(f"buffer_load_dwordx4 {vr(r)}, v16, s[{self.sWO}:{self.sWO+3}], s{self.sT} offen {fl}")
                        e(f"buffer_load_dwordx4 {vr(r+4)}, v17, s[{self.sWO}:{self.sWO+3}], s{self.sT} offen offset:1024 {fl}")
                        self.vm.push(1000 + r)
                        self.vm.push(1000 + r)
            done += batch
            nissued = len(self.vm.q) - n0
            if gate == 10:
                self.re_items = [x for x in done if x[0] >= 10]
                e("L_re_loader:")
        assert not items
        if self.o["tail"] == "two":
            e("L_end:")
            e("s_endpgm")
        else:
            self.loader_tail()
        e("L_safe_loader:")
        e("s_waitcnt vmcnt(0)")
        e("s_barrier")
        e("s_mov_b32 s67, 0")
        e("L_safe_l_loop:")
        self.dma_half(10, 0, 0, base=0, so_reg="s67")
        self.dma_half(10, 0, 1, base=0, so_reg="s67")
        e("s_waitcnt vmcnt(0)")
        e("s_barrier")
        e("s_add_u32 s67, s67, 16384")
        e("s_barrier")
        e("s_cmp_lt_u32 s67, 262144")
        e("s_cbranch_scc1 L_safe_l_loop")
        for p, u in self.re_items:
            self.dma_half(p, u, 0)
            self.dma_half(p, u, 1)
        e("s_waitcnt vmcnt(0)")
        e("s_barrier")
        e("s_branch L_re_loader")

    def poll(self, lab, soff, va, vd, depth=1):
        e = self.e
        hi = vd + 2 * depth
        ld = lambda i: e(f"buffer_load_dwordx2 {vr(vd+2*i, 2)}, v{va}, s[{self.sIN}:{self.sIN+3}], {soff} offen {self.FF}")
        e(f"v_and_b32 v{va}, 15, v0")
        e(f"v_lshlrev_b32 v{va}, 3, v{va}")
        e(f"v_mov_b32 v{hi}, s71")
        e("s_mov_b32 s67, 0")
        for i in range(depth - 1):
            ld(i)
            if self.o.get("pgap"):
                e(f"s_sleep {self.o['pgap']}")
        e(f"{lab}:")
        for i in range(depth):
            d = vd + 2 * i
            ld((i + depth - 1) % depth)
            e(f"s_waitcnt vmcnt({depth-1})")
            e(f"v_subrev_co_u32 v{d}, vcc, s70, v{d}")
            e("s_nop 1")
            e(f"v_subb_co_u32 v{d+1}, vcc, v{d+1}, v{hi}, vcc")
            e(f"v_lshrrev_b32 v{d}, 24, v{d}")
            e(f"v_or_b32 v{d}, v{d}, v{d+1}")
            e(f"v_cmp_ne_u32 vcc, 0, v{d}")
            e("s_nop 4")
            e(f"s_cbranch_vccz {lab}_done")
        e("s_add_u32 s67, s67, 1")
        e("s_cmp_lt_u32 s67, 0x40000")
        e(f"s_cbranch_scc1 {lab}")
        e(f"{lab}_done:")

    def loader_tail(self):
        e = self.e
        NL = 3 if self.o['tail'] == 'sent' else 4
        e("s_cmp_eq_u32 s49, 3")
        e("s_cbranch_scc1 L_end")
        e("s_lshl_b32 s65, s63, 9")
        if self.o.get("lwait") is not None:
            e(f"s_max_u32 s66, s49, {self.o['lwait']}")
            e("s_lshl_b32 s66, s66, 7")
        else:
            e("s_lshl_b32 s66, s49, 7")
        e("s_add_u32 s65, s65, s66")
        self.poll("L_poll_l", "s65", 2, 100, self.o.get("ldepth", 1))
        e("s_lshl_b32 s66, s49, 18")
        e("s_lshl_b32 s67, s63, 14")
        e("s_add_u32 s66, s66, s67")
        for i in range(16):
            if i % 4 == 0 and i:
                e("s_add_u32 s66, s66, 4096")
            e(f"buffer_load_dwordx4 {vr(32+4*i)}, v20, s[{self.sRD}:{self.sRD+3}], s66 offen offset:{(i%4)*1024} sc1")
        e("v_and_b32 v2, 15, v0")
        e("v_lshlrev_b32 v2, 10, v2")
        e("v_bfe_u32 v3, v0, 4, 1")
        e("v_lshl_add_u32 v2, v3, 5, v2")
        e("v_bfe_u32 v3, v0, 5, 1")
        e("v_lshl_add_u32 v2, v3, 4, v2")
        self.unit_offset("s49", "s67")
        e("s_mov_b32 s66, 0xffff0000")
        for i in range(16):
            e(f"s_waitcnt vmcnt({15-i})")
            for k in range(4):
                r = 32 + 4 * i + k
                if i == 0:
                    e(f"v_lshlrev_b32 v{8+2*k}, 16, v{r}")
                    e(f"v_and_b32 v{9+2*k}, s66, v{r}")
                else:
                    e(f"v_lshlrev_b32 v16, 16, v{r}")
                    e(f"v_and_b32 v17, s66, v{r}")
                    e(f"v_add_f32 v{8+2*k}, v{8+2*k}, v16")
                    e(f"v_add_f32 v{9+2*k}, v{9+2*k}, v17")
        for k in range(4):
            e(f"v_cvt_pk_bf16_f32 v{16+k}, v{8+2*k}, v{9+2*k}")
        e("v_permlane16_swap_b32 v16, v18")
        e("v_permlane16_swap_b32 v17, v19")
        e(f"buffer_store_dwordx4 v[16:19], v2, s[{self.sOUT}:{self.sOUT+3}], s67 offen")
        e("L_end:")
        e("s_endpgm")

    def run_slots(self, slots):
        n = len(slots)
        DMAX, BOFF, RPG, WG = self.o["DMAX"], self.o["BOFF"], self.o["RPG"], self.o["WG"]
        first, last = {}, {}
        for j, s in enumerate(slots):
            s.setdefault("gate", s["phase"])
            first.setdefault(s["gate"], j)
            for tag, _ in s["reads"]:
                last[tag[0]] = j
        order = sorted(first, key=lambda p: first[p])
        bar_at = {}
        prev = -1
        for p in order[1:]:
            g = max(first[p] - BOFF, prev + 1, slots[first[p]].get("notbefore", 0))
            assert g < first[p] - 1
            bar_at[g] = p
            prev = g
        opened = set()
        freed = set()
        nxt = 0

        def issue_one(g):
            nonlocal nxt
            for tag, text in slots[nxt]["reads"]:
                self.e(text)
                self.lg.push(tag)
            slots[nxt]["issued"] = g
            nxt += 1

        def issue_reads(g, limit):
            k = 0
            while nxt < n and k < limit and nxt - g <= DMAX and slots[nxt]["gate"] in opened:
                issue_one(g)
                k += 1

        def barrier(p, g, last_mfma=None):
            while nxt < n and slots[nxt]["gate"] in opened:
                assert nxt - g <= self.NFB - 1, "frag buffer overrun"
                issue_one(g)
            fr = [q for q in last if last[q] < nxt and q not in freed]
            freed.update(fr)
            self.lg.need(lambda t: t[0] in fr or t[0] == 96)
            acks = self.ack_at.get(p, [])
            for pr in acks:
                self.vm.need(lambda t: t <= 2 * pr + 1)
            if last_mfma:
                self.e(last_mfma)
            self.e("s_barrier")
            self.events.append((p, fr, acks))
            opened.add(p)
            self.stamp(f"B{p}", 1 if p in (0, 5, 10, 12, 19, 26, "X", 31) else 2)
            for f in slots[first[p]].get("afterbar", []):
                self.emit_fill(f)
        barrier(order[0], -1)
        issue_reads(-1, 5)
        for g, s in enumerate(slots):
            assert nxt > g, (g, nxt)
            if "label" in s:
                s["label"](slots, g, nxt)
            tags = list(s["need"])
            if any(t in tags for t in self.lg.q):
                for k in range(1, WG):
                    if (g + k) % WG and g + k < nxt and slots[g + k]["issued"] <= g - 3:
                        tags += slots[g + k]["need"]
                    else:
                        break
                self.lg.need(lambda t: t in tags)
            ms = s["mfma"]
            if self.o.get("snake", 0) and g % 2 and s["need"][0][1] != "k":
                ms = [ms[1], ms[0]] + ms[2:]
            bm = self.o.get("barmode", 1)
            if self.o.get("dbg_pad") and g % self.o["dbg_pad"] == 0 and s["phase"] < 27:
                self.e("s_nop 3")
            if g in bar_at and bm:
                self.e(ms[0])
                for f in s["fa"]:
                    self.emit_fill(f)
                for m in ms[2:]:
                    self.e(m)
                issue_reads(g, RPG if nxt - g < DMAX - 2 else 1)
                fb_late = s.get("fb_after")
                if not fb_late:
                    for f in s["fb"]:
                        self.emit_fill(f)
                barrier(bar_at[g], g, ms[1])
                if fb_late:
                    for f in s["fb"]:
                        self.emit_fill(f)
                if bm == 2:
                    issue_reads(g, 1)
                continue
            self.e(ms[0])
            if g - 1 in bar_at and bm:
                issue_reads(g, 1)
            for f in s["fa"]:
                self.emit_fill(f)
            self.e(ms[1])
            issue_reads(g, RPG if nxt - g < DMAX - 2 else 1)
            for f in s["fb"]:
                self.emit_fill(f)
            for m in ms[2:]:
                self.e(m)
            if g in bar_at:
                barrier(bar_at[g], g)
                issue_reads(g, RPG)

    def emit_fill(self, f):
        if callable(f):
            f()
        else:
            self.e(f)

    def fb(self):
        b = 4 * (self.fbi % self.NFB)
        self.fbi += 1
        return b

    def spread(self, slots, ops, wa=1, wb=1):
        n = len(ops)
        tot = (wa + wb) * len(slots)
        acc = 0
        for s in slots:
            for key, w in (("fa", wa), ("fb", wb)):
                s[key] += ops[acc * n // tot:(acc + w) * n // tot]
                acc += w

    def setup(self):
        e = self.e
        e("L_compute:")
        if self.o["cpf"]:
            e("s_getpc_b64 s[98:99]")
            e("L_pc:")
            e(f"s_sub_u32 s98, s98, L_pc-{KN}")
            e("s_subb_u32 s99, s99, 0")
            e("s_bfe_u32 s65, s2, 0x40003")
            e("s_lshl_b32 s65, s65, 2")
            e(f"s_add_u32 s65, s65, s{self.sW}")
            e("s_lshl_b32 s65, s65, 10")
            e("v_lshrrev_b32 v1, 3, v0")
            e("v_lshl_add_u32 v1, v1, 7, s65")
            e(f"v_min_u32 v1, L_code_end-{KN}-4, v1")
            e(f"global_load_dword v{self.vM}, v1, s[98:99]")
        if self.o["prio"]:
            e(f"s_setprio {self.o['prio']}")
        e(f"s_mov_b32 s{self.sMODE}, 1")
        e(f"s_and_b32 s50, s{self.sW}, 1")
        e(f"s_lshr_b32 s51, s{self.sW}, 1")
        e("v_and_b32 v3, 15, v0")
        e("v_lshrrev_b32 v4, 4, v0")
        e("v_xor_b32 v1, v4, v3")
        e("v_lshlrev_b32 v1, 4, v1")
        e("v_lshl_add_u32 v1, v3, 8, v1")
        e("s_lshl_b32 s65, s50, 13")
        e("s_lshl_b32 s66, s68, 6")
        e("s_or_b32 s65, s65, s66")
        e(f"v_xor_b32 v{self.vXA}, s65, v1")
        for s in range(1, 4):
            e(f"v_xor_b32 v{self.vXA+s}, {s*64}, v{self.vXA}")
        e("v_bfe_u32 v5, v0, 4, 1")
        e("v_lshrrev_b32 v6, 5, v0")
        e("v_lshl_or_b32 v1, v5, 1, v6")
        e("v_xor_b32 v1, v1, v3")
        e("v_lshlrev_b32 v1, 4, v1")
        e(f"v_lshl_add_u32 v{self.vKA}, v3, 8, v1")
        for s in range(1, 4):
            e(f"v_xor_b32 v{self.vKA+s}, {s*64}, v{self.vKA}")
        e("v_bfe_u32 v1, v0, 2, 2")
        e("v_and_b32 v2, 1, v0")
        e("v_bfe_u32 v3, v0, 1, 1")
        e("v_lshl_or_b32 v5, v5, 2, v1")
        e("v_lshl_or_b32 v7, v5, 1, v3")
        e("v_lshlrev_b32 v7, 4, v7")
        e("v_lshl_or_b32 v7, v2, 3, v7")
        e("v_lshl_add_u32 v6, v4, 3, v1")
        e("v_lshl_add_u32 v6, v6, 9, v7")
        e("s_lshl_b32 s65, s51, 8")
        e(f"v_add_u32 v{self.vWA}, s65, v6")
        for c in range(1, 8):
            e(f"v_xor_b32 v{self.vWA+c}, {c*32}, v{self.vWA}")
        for c in range(8):
            e(f"v_add_u32 v{self.vWA+8+c}, 65536, v{self.vWA+c}")
        e("v_lshl_add_u32 v6, v4, 2, v1")
        e(f"v_lshl_add_u32 v{self.vT}, v6, 8, v7")
        e(f"v_add_u32 v{self.vT}, 65536, v{self.vT}")
        e("v_and_b32 v7, 6, v5")
        e("v_or_b32 v7, v7, v3")
        e("v_lshlrev_b32 v7, 4, v7")
        e("v_lshl_or_b32 v7, v2, 3, v7")
        e("v_lshl_add_u32 v7, v6, 7, v7")
        e("s_lshr_b32 s65, s61, 3")
        e("s_xor_b32 s65, s65, s51")
        e("s_lshl_b32 s65, s65, 16")
        e("s_lshl_b32 s66, s51, 6")
        e("s_or_b32 s65, s65, s66")
        e(f"v_xor_b32 v{self.vT+1}, s65, v7")
        e(f"s_lshl_b32 s65, s{self.sW}, 15")
        e(f"v_lshl_add_u32 v{self.vST}, v0, 4, s65")
        e(f"s_lshl_b32 s65, s{self.sW}, 13")
        e(f"s_add_u32 s65, s65, {self.EX}")
        e(f"v_lshl_add_u32 v{self.vEXW}, v0, 4, s65")
        e(f"v_xor_b32 v{self.vEXR}, 16384, v{self.vEXW}")
        e("v_and_b32 v1, 3, v0")
        e("v_lshlrev_b32 v1, 13, v1")
        e(f"s_lshl_b32 s65, s{self.sW}, 2")
        e(f"s_add_u32 s65, s65, {self.EX+7168}")
        e(f"v_add_u32 v{self.vFL}, s65, v1")
        for i in range(4):
            e(f"v_mov_b32 v{self.ONE+i}, 0x3f803f80")
        e(f"v_mov_b32 v{self.vMP}, 0xff800000")
        e(f"v_mov_b32 v{self.vMP+1}, 0xff800000")
        sc = math.log2(math.e) / math.sqrt(128.0)
        e(f"s_mov_b32 s{self.sSC}, {f32(sc)}")
        e(f"s_mov_b32 s{self.sSC+1}, {f32(sc)}")
        e(f"s_mov_b32 s79, {f32(self.o['thresh'])}")
        e("s_waitcnt lgkmcnt(0)")
        e("s_lshl_b32 s66, s61, 20")
        e("s_lshl_b32 s67, s63, 10")
        e("s_add_u32 s66, s66, s67")
        e(f"s_add_u32 s{self.sWS}, s18, s66")
        e(f"s_addc_u32 s{self.sWS+1}, s19, 0")
        e(f"s_mov_b32 s{self.sWS+2}, {(1 << 20) - 15*1024}")
        e(f"s_mov_b32 s{self.sWS+3}, 0x20000")
        self.tail_srds(False)
        if self.o.get("tlbw", 0):
            e("s_lshl_b32 s64, s61, 3")
            e("s_add_u32 s64, s64, s60")
            self.srd(self.sK, 6, 64, 18, 262144)
            self.srd(self.sV, 8, 64, 18, 262144)
            self.srd(self.sWO, 12, 63, 18, 262144)
            st = self.o["tlbw"]
            e(f"v_mul_u32_u24 v1, {st}, v0")
            e(f"s_mul_i32 s65, s{self.sW}, {st*64}")
            e(f"buffer_load_dword a40, v1, s[{self.sK}:{self.sK+3}], s65 offen nt")
            e(f"buffer_load_dword a41, v1, s[{self.sV}:{self.sV+3}], s65 offen nt")
            e("v_mov_b32 v1, 0")
            e(f"buffer_load_dword a42, v1, s[{self.sWO}:{self.sWO+3}], 0 offen")
            e(f"buffer_load_dword a43, v1, s[{self.sRD}:{self.sRD+3}], 0 offen nt")

    def sentinel_ops(self):
        q = self.Q
        ops = ["v_lshlrev_b32 v1, 4, v0"] + [f"v_mov_b32 v{q+i}, -1" for i in range(4)]
        ops += ["s_lshl_b32 s65, s63, 14", f"s_lshl_b32 s66, s{self.sW}, 12", "s_add_u32 s65, s65, s66",
                f"s_add_u32 s65, s65, {3 << 18}"]
        ops += [f"buffer_store_dwordx4 {vr(q)}, v1, s[{self.sRD}:{self.sRD+3}], s65 offen offset:{i*1024} sc1"
                for i in range(4)]
        ops += ["v_and_b32 v2, 15, v0", "v_lshlrev_b32 v2, 2, v2", "v_mov_b32 v3, 0", "s_lshl_b32 s65, s63, 8",
                f"s_lshl_b32 s66, s{self.sW}, 6", "s_add_u32 s65, s65, s66",
                f"buffer_store_dword v3, v2, s[{self.sIN}:{self.sIN+3}], s65 offen sc0 sc1"]
        return ops

    def slot(self, phase, reads, mfma, need):
        return dict(phase=phase, reads=reads, mfma=mfma, need=need, fa=[], fb=[])

    def qproj_slots(self):
        slots = []
        xphase = {}
        XB = self.S[0]
        for phi in range(10):
            first = len(slots)
            xr = []
            todo = []
            for upper, item in enumerate(self.PH[phi]):
                kind, n = item[0], int(item[1:])
                base = self.slot_addr(phi, upper)
                if kind == "x":
                    for s in range(4):
                        for qq in range(2):
                            a = XB + (n % 2) * 32 + 8 * s + 4 * qq
                            xr.append(((phi, "x", n, s, qq),
                                       f"ds_read_b128 {vr(a)}, v{self.vXA+s} offset:{base+qq*4096}"))
                    xphase[n] = phi
                else:
                    todo += [(upper, n, c) for c in range(8)]
            if phi == 9:
                todo.sort(key=lambda x: (x[2], x[1]))
            for upper, n, c in todo:
                fb = self.fb()
                va = self.vWA + c + 8 * upper
                o = self.slot_addr(phi, upper) % 65536
                tg = [(phi, "w", n, c, g) for g in range(2)]
                reads = [(tg[g], f"ds_read_b64_tr_b16 {ar(fb+2*g, 2)}, v{va} offset:{o+g*4*512}") for g in range(2)]
                ch, s = n // 4, n % 4
                ms = []
                for qq in range(2):
                    d = self.O + 8 * c + 4 * qq
                    a = XB + (ch % 2) * 32 + 8 * s + 4 * qq
                    ms.append(f"{MF} {vr(d)}, {ar(fb)}, {vr(a)}, {'0' if n == 0 else vr(d)}")
                slots.append(self.slot(phi, reads, ms, tg + [(xphase[ch], "x", ch, s, qq) for qq in range(2)]))
            if xr:
                if phi == 0:
                    slots[first]["reads"] = xr[:2] + slots[first]["reads"]
                    xr = xr[2:]
                    first += 2
                for i, r in enumerate(xr):
                    slots[first + i]["reads"].insert(0, r)
        return slots

    def scale4(self, d, sc_scalar=None, sc_v=None):
        if self.o["pk"]:
            src = f"s[{sc_scalar}:{sc_scalar+1}]" if sc_scalar is not None else vr(sc_v, 2)
            return [f"v_pk_mul_f32 {vr(d+2*i, 2)}, {vr(d+2*i, 2)}, {src}" for i in range(2)]
        src = f"s{sc_scalar}" if sc_scalar is not None else f"v{sc_v}"
        return [f"v_mul_f32 v{d+i}, {src}, v{d+i}" for i in range(4)]

    def q_convert(self, ks):
        ops = []
        for T in range(2):
            for qq in range(2):
                q = self.Q + 16 * qq + 4 * ks
                d = self.O + 8 * (2 * ks + T) + 4 * qq
                ops += self.scale4(d, sc_scalar=self.sSC)
                ops.append(f"v_cvt_pk_bf16_f32 v{q+2*T}, v{d}, v{d+1}")
                ops.append(f"v_cvt_pk_bf16_f32 v{q+2*T+1}, v{d+2}, v{d+3}")
        for qq in range(2):
            q = self.Q + 16 * qq + 4 * ks
            ops.append(f"v_permlane16_swap_b32 v{q}, v{q+2}")
            ops.append(f"v_permlane16_swap_b32 v{q+1}, v{q+3}")
        return ops

    def k_slot(self, tau, kt, ks, first_c, base=None):
        phi = 10 + tau // 2
        fb = self.fb()
        tag = (phi, "k", tau, kt, ks)
        o = (self.slot_addr(phi, 0) if base is None else base) + (tau % 2) * 8192 + kt * 4096
        reads = [(tag, f"ds_read_b128 {ar(fb)}, v{self.vKA+ks} offset:{o}")]
        ms = []
        for qq in range(2):
            d = self.S[tau % 2] + 8 * qq + 4 * kt
            C = vr(d) if ks else ("0" if first_c else vr(self.C + 4 * qq))
            ms.append(f"{MF} {vr(d)}, {ar(fb)}, {vr(self.Q+16*qq+4*ks)}, {C}")
        return self.slot(phi, reads, ms, [tag])

    def v_slot(self, tau, dt):
        phi = 11 + tau // 2
        fb = self.fb()
        o = self.slot_addr(phi, 1) % 65536 + (tau % 2) * 8192
        tg = [(phi, "v", tau, dt, g) for g in range(2)]
        reads = [(tg[g], f"ds_read_b64_tr_b16 {ar(fb+2*g, 2)}, v{self.vVA+dt} offset:{o+g*4096}") for g in range(2)]
        ms = []
        for qq in range(2):
            d = self.O + 8 * dt + 4 * qq
            ms.append(f"{MF} {vr(d)}, {ar(fb)}, {vr(self.P[tau % 2]+4*qq)}, {'0' if tau == 0 else vr(d)}")
        return self.slot(phi, reads, ms, tg)

    def sum_mfma(self, tau, qq):
        d = self.LS + 4 * qq
        return f"{MF} {vr(d)}, {vr(self.ONE)}, {vr(self.P[tau % 2]+4*qq)}, {'0' if tau == 0 else vr(d)}"

    def sm_list(self, t, sub):
        r, pw = self.S[t % 2], self.P[t % 2]
        ops = []
        for j in range(18):
            if sub and j < 16:
                ops.append(f"v_sub_f32 v{r+j}, v{r+j}, v{self.vM+j//8}")
            jj = j - 1
            if 0 <= jj < 16:
                ops.append(f"v_exp_f32 v{r+jj}, v{r+jj}")
            if jj >= 2 and jj % 2 == 0:
                ops.append(f"v_cvt_pk_bf16_f32 v{pw+jj//2-1}, v{r+jj-2}, v{r+jj-1}")
        return ops

    def sm_steady(self, it, t):
        r, pw = self.S[t % 2], self.P[t % 2]
        for j in range(16):
            it[j]["fa"].append(f"v_exp_f32 v{r+j}, v{r+j}")
            if j >= 8:
                k = j - 8
                it[j]["fb"].append(f"v_cvt_pk_bf16_f32 v{pw+k}, v{r+2*k}, v{r+2*k+1}")

    def max_ops(self, regs, m, init):
        ops = []
        regs = list(regs)
        cur = init
        while regs:
            if len(regs) >= 2:
                ops.append(f"v_max3_f32 v{m}, v{cur}, v{regs[0]}, v{regs[1]}")
                regs = regs[2:]
            else:
                ops.append(f"v_max_f32 v{m}, v{cur}, v{regs[0]}")
                regs = regs[1:]
            cur = m
        return ops

    def xlane_max(self, m, tmp):
        return [f"v_mov_b32 v{tmp}, v{m}", f"v_permlane32_swap_b32 v{tmp}, v{m}", f"v_max_f32 v{m}, v{m}, v{tmp}",
                f"v_mov_b32 v{tmp}, v{m}", f"v_permlane16_swap_b32 v{tmp}, v{m}", f"v_max_f32 v{m}, v{m}, v{tmp}"]

    def attention_slots(self):
        s0 = [self.k_slot(0, kt, ks, True) for kt in range(2) for ks in range(4)]
        s1 = [self.k_slot(1, kt, ks, False) for kt in range(2) for ks in range(4)]
        a, b = [], []
        for qq, lst in ((0, a), (1, b)):
            r = self.S[0] + 8 * qq
            lst += self.max_ops(range(r, r + 4), self.vM + qq, self.vMP + qq)
            lst += self.xlane_max(self.vM + qq, 1 + qq)
            lst += [f"v_sub_f32 v{self.C+4*qq+i}, 0, v{self.vM+qq}" for i in range(4)]
        ops = [x for p in zip(a, b) for x in p]
        self.spread(s0[5:], ops)
        self.spread(s1, self.sm_list(0, True), 3, 2)
        slots = s0 + s1
        for t in range(1, 31):
            it = [self.k_slot(t + 1, kt, ks, False) for kt in range(2) for ks in range(4)]
            it += [self.v_slot(t - 1, dt) for dt in range(8)]
            self.sm_steady(it, t)
            for qq in range(2):
                it[(3, 7)[qq]]["mfma"].append(self.sum_mfma(t - 1, qq))
            slots += it
        it = [self.v_slot(30, dt) for dt in range(8)]
        self.spread(it[:7], self.sm_list(31, False))
        for qq in range(2):
            it[qq]["mfma"].append(self.sum_mfma(30, qq))
            it[7]["mfma"].append(self.sum_mfma(31, qq))
        slots += it
        slots += [self.v_slot(31, dt) for dt in range(8)]
        return slots

    def o_convert(self, f):
        ops = []
        for qq in range(2):
            pk = self.S[0] + 8 * f + 4 * qq
            for T in range(2):
                r = self.O + 8 * (2 * f + T) + 4 * qq
                ops += self.scale4(r, sc_v=2 + 2 * qq)
                ops.append(f"v_cvt_pk_bf16_f32 v{pk+2*T}, v{r}, v{r+1}")
                ops.append(f"v_cvt_pk_bf16_f32 v{pk+2*T+1}, v{r+2}, v{r+3}")
            if f == 0 and qq == 0:
                ops.append(f"v_min_u32 v{pk}, -2, v{pk}")

            def wr(pk=pk, qq=qq):
                self.e(f"ds_write_b128 v{self.vEXW}, {vr(pk)} offset:{(2*f+qq)*1024}")
                self.lg.push((96, "ow"))
            ops.append(wr)
        return ops

    def oacc(self, blk):
        return [self.C, self.C + 16, self.O, self.O + 16][blk % 4]

    def outproj_slots(self):
        slots = []
        parts = [(blk, oth) for blk in range(8) for oth in range(2)]
        self.blk_end = {}
        for blk, oth in parts:
            phi = 27 + blk
            for f in range(4):
                for c in range(2):
                    fb = self.fb()
                    o = self.slot_addr(phi, 0) + f * 4096
                    tg = [(phi, "o", oth, f, c, g) for g in range(2)]
                    reads = [(tg[g], f"ds_read_b64_tr_b16 {ar(fb+2*g, 2)}, v{self.vOA+2*oth+c} offset:{o+g*2048}")
                             for g in range(2)]
                    need = list(tg)
                    ms = []
                    for qq in range(2):
                        if oth:
                            bq = self.Q + 8 * f + 4 * qq
                            need.append((97, "of", f, qq))
                            if blk == 0 and c == 0:
                                reads.insert(0, ((97, "of", f, qq),
                                                 f"ds_read_b128 {vr(bq)}, v{self.vEXR} offset:{(2*f+qq)*1024}"))
                        else:
                            bq = self.S[0] + 8 * f + 4 * qq
                        d = self.oacc(blk) + 8 * qq + 4 * c
                        C = "0" if (oth == 0 and f == 0) else vr(d)
                        ms.append(f"{MF} {vr(d)}, {ar(fb)}, {vr(bq)}, {C}")
                    sl = self.slot(phi, reads, ms, need)
                    if blk == 0 and oth:
                        sl["gate"] = "X"
                    slots.append(sl)
            self.blk_end[blk] = len(slots)
        return slots

    def store_ops(self, blk):
        ops = []
        for qq in range(2):
            d = self.oacc(blk) + 8 * qq
            pk = self.O + 32 + (blk % 4) * 8 + 4 * qq
            ops.append(f"s_mov_b32 s{self.sT+qq}, {blk*131072+qq*16384}")
            for i in range(4):
                ops.append(f"v_cvt_pk_bf16_f32 v{pk+i}, v{d+2*i}, v{d+2*i+1}")
            if blk >= 6 and self.o["tail"] == "sent":
                for i in range(4):
                    ops.append(f"v_min_u32 v{pk+i}, -2, v{pk+i}")

            def st(pk=pk, qq=qq):
                self.e(f"buffer_store_dwordx4 {vr(pk)}, v{self.vST}, s[{self.sWS}:{self.sWS+3}], s{self.sT+qq} offen {self.o.get('st_flags', '' if self.o['tail'] == 'two' else 'sc1')}")
                self.vm.push(blk)
            ops.append(st)
        return ops

    def ack_op(self, pr):
        def f():
            self.vm.need(lambda t: t <= 2 * pr + 1)
            self.e("s_mov_b64 exec, 15")
            self.e(f"buffer_store_dwordx2 v[4:5], v6, s[{self.sIN}:{self.sIN+3}], s55 offen offset:{128*pr} {self.FF}")
            self.e("s_mov_b64 exec, -1")
            self.vm.push(99)
        return f

    def compute(self):
        e = self.e
        self.fbi = 0
        self.setup()
        if self.stamps:
            e(f"v_mov_b32 v{self.vS1}, 0")
            e(f"v_mov_b32 v{self.vS2}, 0")
            e(f"v_writelane_b32 v{self.vS1}, s70, 0")
        self.stamp("setup")
        qs = self.qproj_slots()
        at = self.attention_slots()
        os_ = self.outproj_slots()
        nq, na = len(qs), len(at)
        self.spread(qs[-11:-7], self.q_convert(0), 3, 1)
        self.spread(qs[-7:-3], self.q_convert(1), 3, 1)
        self.spread(qs[-3:], self.q_convert(2), 3, 1)
        self.spread(at[0:3], self.q_convert(3), 3, 2)
        self.spread(at[3:5], [f"v_xor_b32 v{self.vVA+d}, {d*32}, v{self.vT}" for d in range(8)])
        self.spread(qs[-24:-20], [f"v_xor_b32 v{self.vOA+2*o+c}, {o*65536+c*32}, v{self.vT+1}"
                                  for o in range(2) for c in range(2)], 1, 0)

        sp = self.o.get("sentpos", 48)
        T = self.o["tail"]
        assert T in ("two", "flag")
        at[4]["fb"].append("s_waitcnt vmcnt(0)")

        def re_label(slots, g, nxt):
            self.re_reads = [r for s in slots[g:nxt] for r in s["reads"]]
            assert all(s["phase"] == 10 for s in slots[g:nxt])
            e("L_re_compute:")
        at[5]["label"] = re_label
        L0, L1 = self.LS, self.LS + 4

        def vote():
            e("s_cmp_lg_u64 s[98:99], 0")
            e(f"s_cselect_b32 s52, s{self.sMODE}, 0")
            e("v_mov_b32 v1, s52")
            e(f"ds_write_b32 v{self.vFL}, v1")
            self.lg.push((96, "vote"))
        self.spread(at[-7:-5], [f"v_rcp_f32 v2, v{L0}", f"v_rcp_f32 v4, v{L1}", f"v_add_f32 v1, v{L0}, v{L1}",
                                "v_mov_b32 v3, v2", "v_mov_b32 v5, v4",
                                "v_cmp_nlt_f32 s[98:99], v1, s79"])
        at[-5]["fb"].append(vote)
        self.spread(at[-4:-2], self.o_convert(0), 2, 1)
        self.spread(at[-2:], self.o_convert(1), 2, 1)
        self.spread(os_[0:3], self.o_convert(2), 2, 1)
        self.spread(os_[3:5], self.o_convert(3), 2, 1)

        def vote_read():
            e(f"v_and_b32 v1, {~1023 & 0xffffffff}, v{self.vEXW}")
            e(f"ds_read_b128 {vr(self.S[1]+12)}, v1 offset:7168")
            self.lg.push((95, "vr"))
        os_[0]["afterbar"] = [vote_read]
        os_[0]["notbefore"] = nq + na - 5

        def vote_check():
            self.lg.need(lambda t: t == (95, "vr"))
            r = self.S[1] + 12
            e(f"v_or3_b32 v1, v{r}, v{r+1}, v{r+2}")
            e(f"v_or_b32 v1, v1, v{r+3}")
            e("v_readfirstlane_b32 s52, v1")
            e("s_cmp_lg_u32 s52, 0")
            e("s_cbranch_scc1 L_safe_compute")
        os_[0]["fb"].append(vote_check)
        os_[8]["notbefore"] = nq + na + self.o.get("xpos", 4)
        os_[9]["fa"] += ["v_and_b32 v6, 1, v0", "v_bfe_u32 v1, v0, 1, 1"]
        os_[10]["fa"] += ["v_lshl_add_u32 v6, v1, 3, v6", "v_mov_b32 v7, 1"]
        os_[11]["fa"] += ["v_lshlrev_b32 v6, 9, v6", f"s_lshl_b32 s55, s{self.sW}, 10"]
        os_[12]["fa"] += ["s_lshl_b32 s52, s63, 3", "s_add_u32 s55, s55, s52"]
        AD = self.o["ackdist"]
        late = []
        for blk in range(7):
            j = max(self.blk_end[blk], self.o.get("stdelay", 0) + 4 * blk)
            self.spread(os_[j + 2:j + 6], self.store_ops(blk), 2, 1)
        self.ack_at = {}
        if T != "two":
            self.ack_at = {self.o.get("ack0", 32): [0], self.o.get("ack1", 34): [1]}
            late = [2]
        at[-1]["fb"].append(lambda: self.stamp("attn", 1))
        self.run_slots(qs + at + os_)
        for op in self.store_ops(7):
            self.emit_fill(op)
        self.stamp("outproj", 1)
        if T != "two":
            self.compute_tail(late)
        if self.stamps:
            e("s_waitcnt vmcnt(0)")
            self.stamp("drain", 1)
            e("s_add_u32 s44, s18, 0x2000000")
            e("s_addc_u32 s45, s19, 0")
            e("s_mov_b32 s46, 0x4000000")
            e("s_mov_b32 s47, 0x20000")
            e("s_mul_i32 s65, s2, 4")
            e(f"s_add_u32 s65, s65, s{self.sW}")
            e("s_mul_i32 s65, s65, 512")
            e("v_lshlrev_b32 v1, 2, v0")
            e("s_getreg_b32 s66, hwreg(HW_REG_XCC_ID)")
            e(f"v_writelane_b32 v{self.vS1}, s66, 63")
            e(f"v_writelane_b32 v{self.vS2}, s67, 63")
            e(f"buffer_store_dword v{self.vS1}, v1, s[44:47], s65 offen")
            e(f"buffer_store_dword v{self.vS2}, v1, s[44:47], s65 offen offset:256")
        e("s_endpgm")
        e("L_safe_compute:")
        e(f"v_mov_b32 v1, {self.EX}")
        e("v_mov_b32 v2, -1")
        e("ds_write_b32 v1, v2")
        e("s_waitcnt lgkmcnt(0)")
        e("s_barrier")
        e("s_barrier")
        e(f"s_mov_b32 s{self.sMODE}, 0")
        e("s_mov_b32 s67, 0")
        e("L_safe_c_loop:")
        e("s_barrier")
        for tau in range(2):
            self.fbi = 0
            ks_ = [self.k_slot(tau, kt, ks, True, base=0) for kt in range(2) for ks in range(4)]
            for s in ks_:
                e(s["reads"][0][1])
            e("s_waitcnt lgkmcnt(0)")
            for s in ks_:
                e(s["mfma"][0])
                e(s["mfma"][1])
            e("s_nop 7")
        e("s_barrier")
        for qq in range(2):
            regs = [self.S[tau] + 8 * qq + i for tau in range(2) for i in range(8)]
            for op in self.max_ops(regs, self.vMP + qq, self.vMP + qq):
                e(op)
        e("s_add_u32 s67, s67, 1")
        e("s_cmp_lt_u32 s67, 16")
        e("s_cbranch_scc1 L_safe_c_loop")
        e("s_barrier")
        self.fbi = 0
        ks_ = [self.k_slot(0, kt, ks, True) for kt in range(2) for ks in range(4)][:5]
        for s in ks_:
            e(s["reads"][0][1])
        e("s_waitcnt lgkmcnt(0)")
        for s in ks_:
            e(s["mfma"][0])
            e(s["mfma"][1])
        e("s_nop 7")
        for tag, text in self.re_reads:
            e(text)
        e("s_waitcnt lgkmcnt(0)")
        e("s_branch L_re_compute")

    def compute_tail(self, late):
        e = self.e
        e("s_memrealtime s[72:73]")
        e("s_lshl_b32 s65, s63, 14")
        e(f"s_lshl_b32 s67, s{self.sW}, 8")
        e("s_add_u32 s65, s65, s67")
        e(f"s_add_u32 s65, s65, {3 << 18}")
        for i in range(1, 4):
            e(f"s_add_u32 s{43+i}, s65, {i*4096}")
        e("v_lshlrev_b32 v1, 2, v0")
        e("v_lshrrev_b32 v2, 2, v0")
        e("v_lshlrev_b32 v2, 10, v2")
        e("v_bfe_u32 v3, v0, 1, 1")
        e("v_lshl_add_u32 v2, v3, 5, v2")
        e("v_and_b32 v3, 1, v0")
        e("v_lshl_add_u32 v2, v3, 2, v2")
        self.unit_offset("3", "s47")
        e(f"s_lshl_b32 s52, s{self.sW}, 3")
        e("s_add_u32 s47, s47, s52")
        e("s_mov_b32 s66, 0xffff0000")
        e("s_waitcnt lgkmcnt(0)")
        self.lg.q = []
        e("v_mov_b32 v4, s72")
        e("v_mov_b32 v5, s73")
        for pr in late:
            self.ack_op(pr)()
        self.stamp("acked", 1)
        if self.o["tail"] == "flag":
            self.ack_op(3)()
            e("s_lshl_b32 s52, s63, 9")
            e("s_add_u32 s52, s52, 384")
            self.stamp("pub", 1)
            self.poll("L_poll_f", "s52", 3, 64, self.o.get("pdepth", 1))
            self.stamp("polled", 1)
        e("s_mov_b32 s67, 0")
        e("L_poll_c:")
        for i in range(16):
            so = "s65" if i < 4 else f"s{43+i//4}"
            e(f"buffer_load_dword v{48+i}, v1, s[{self.sRD}:{self.sRD+3}], {so} offen offset:{(i%4)*1024} sc1")
        e("s_add_u32 s67, s67, 1")
        for i in range(0, 16, 2):
            e(f"s_waitcnt vmcnt({14-i})")
            if i == 0:
                e("v_max_u32 v3, v48, v49")
                e("v_lshlrev_b32 v4, 16, v48")
                e("v_and_b32 v5, s66, v48")
            else:
                e(f"v_max3_u32 v3, v3, v{48+i}, v{49+i}")
            for k in ((1,) if i == 0 else (i, i + 1)):
                e(f"v_lshlrev_b32 v6, 16, v{48+k}")
                e(f"v_and_b32 v7, s66, v{48+k}")
                e("v_add_f32 v4, v4, v6")
                e("v_add_f32 v5, v5, v7")
        e("v_cmp_eq_u32 vcc, -1, v3")
        e("s_cmp_gt_u32 s67, 0x40000")
        e("s_cbranch_scc1 L_poll_c_done")
        e("s_nop 3")
        if self.o["tail"] == "sent":
            e("s_cbranch_vccnz L_poll_c")
        e("L_poll_c_done:")
        e("v_cvt_pk_bf16_f32 v4, v4, v5")
        e(f"buffer_store_dword v4, v2, s[{self.sOUT}:{self.sOUT+3}], s47 offen")
        self.stamp("reduced", 1)

    def main_kernel(self):
        self.events = []
        self.compute()
        comp = self.L
        self.L = []
        self.prologue()
        self.loader()
        self.L += comp
        self.e("L_code_end:")
        return hazard_pass(self.L)


RN = "gqa_reduce_kernel"


def reduce_kernel(flags=""):
    L = []
    e = lambda s: L.append(s if s.endswith(":") else "    " + s)
    e("s_cmp_ge_u32 s2, 256")
    e("s_cbranch_scc1 R_end")
    e("s_load_dwordx2 s[4:5], s[0:1], 40")
    e("s_load_dwordx2 s[6:7], s[0:1], 56")
    e("v_lshrrev_b32 v1, 6, v0")
    e("v_and_b32 v0, 63, v0")
    e("v_readfirstlane_b32 s3, v1")
    e("v_lshlrev_b32 v1, 4, v0")
    e("s_lshr_b32 s16, s2, 4")
    e("s_and_b32 s17, s2, 15")
    e("s_lshl_b32 s18, s16, 20")
    e("s_lshl_b32 s19, s17, 14")
    e("s_add_u32 s18, s18, s19")
    e("s_lshl_b32 s19, s3, 18")
    e("s_add_u32 s18, s18, s19")
    e("s_waitcnt lgkmcnt(0)")
    e("s_add_u32 s8, s6, s18")
    e("s_addc_u32 s9, s7, 0")
    e("s_mov_b32 s10, 16384")
    e("s_mov_b32 s11, 0x20000")
    for i in range(16):
        if i % 4 == 0:
            e(f"s_mov_b32 s20, {(i//4)*4096}")
        e(f"buffer_load_dwordx4 {vr(32+4*i)}, v1, s[8:11], s20 offen offset:{(i%4)*1024} {flags}")
    e("s_mov_b32 s12, s4")
    e("s_mov_b32 s13, s5")
    e("s_mov_b32 s14, 1048576")
    e("s_mov_b32 s15, 0x20000")
    e("v_and_b32 v2, 15, v0")
    e("v_lshlrev_b32 v2, 10, v2")
    e("v_bfe_u32 v3, v0, 4, 1")
    e("v_lshl_add_u32 v2, v3, 5, v2")
    e("v_bfe_u32 v3, v0, 5, 1")
    e("v_lshl_add_u32 v2, v3, 4, v2")
    e("s_lshl_b32 s21, s3, 1")
    e("s_lshr_b32 s22, s17, 3")
    e("s_add_u32 s21, s21, s22")
    e("s_and_b32 s22, s16, 7")
    e("s_xor_b32 s21, s21, s22")
    e("s_lshl_b32 s21, s21, 7")
    e("s_bfe_u32 s22, s17, 0x10002")
    e("s_lshl_b32 s22, s22, 6")
    e("s_add_u32 s21, s21, s22")
    e("s_and_b32 s22, s17, 3")
    e("s_lshl_b32 s22, s22, 14")
    e("s_add_u32 s21, s21, s22")
    e("s_lshl_b32 s22, s16, 16")
    e("s_add_u32 s21, s21, s22")
    e("s_mov_b32 s19, 0xffff0000")
    for i in range(16):
        e(f"s_waitcnt vmcnt({15-i})")
        for k in range(4):
            r = 32 + 4 * i + k
            if i == 0:
                e(f"v_lshlrev_b32 v{8+2*k}, 16, v{r}")
                e(f"v_and_b32 v{9+2*k}, s19, v{r}")
            else:
                e(f"v_lshlrev_b32 v16, 16, v{r}")
                e(f"v_and_b32 v17, s19, v{r}")
                e(f"v_add_f32 v{8+2*k}, v{8+2*k}, v16")
                e(f"v_add_f32 v{9+2*k}, v{9+2*k}, v17")
    for k in range(4):
        e(f"v_cvt_pk_bf16_f32 v{16+k}, v{8+2*k}, v{9+2*k}")
    e("v_permlane16_swap_b32 v16, v18")
    e("v_permlane16_swap_b32 v17, v19")
    e("buffer_store_dwordx4 v[16:19], v2, s[12:15], s21 offen")
    e("R_end:")
    e("s_endpgm")
    return hazard_pass(L)[0]


def kd(name, vgpr, accum, sgpr=102):
    return f""".amdhsa_kernel {name}
  .amdhsa_next_free_vgpr {vgpr}
  .amdhsa_next_free_sgpr {sgpr}
  .amdhsa_accum_offset {accum}
  .amdhsa_group_segment_fixed_size 0
  .amdhsa_kernarg_size 64
  .amdhsa_user_sgpr_count 2
  .amdhsa_user_sgpr_kernarg_segment_ptr 1
  .amdhsa_system_sgpr_workgroup_id_x 1
.end_amdhsa_kernel
"""


def build(stamps=0, opts=None):
    g = Gen(stamps, opts)
    body, added = g.main_kernel()
    txt = HEADER
    two = g.o["tail"] == "two"
    if two:
        txt += f"; @launch kernel={KN} grid=(256,1,1) block=(512,1,1) lds=163840\n"
        txt += f"; @launch kernel={RN} grid=(256,1,1) block=(256,1,1) lds=0\n"
    else:
        txt += "; @launch grid=(256,1,1) block=(512,1,1) lds=163840\n"
    txt += '.amdgcn_target "amdgcn-amd-amdhsa--gfx950"\n.text\n'
    txt += f".globl {KN}\n.p2align 8\n.type {KN},@function\n{KN}:\n" + "\n".join(body[:-1]) + "\n"
    if two:
        txt += f".globl {RN}\n.p2align 8\n.type {RN},@function\n{RN}:\n"
        txt += "\n".join(reduce_kernel(g.o.get("red_flags", "").replace("+", " "))) + "\n"
    txt += body[-1] + "\n"
    txt += '.section .rodata,"a"\n.p2align 6\n' + kd(KN, 256, g.ACC)
    if two:
        txt += ".p2align 6\n" + kd(RN, 96, 96, 32)
    txt += "; stamps: " + " ".join(g.stamp_names) + "\n"
    return txt, added


if __name__ == "__main__":
    import argparse
    ap = argparse.ArgumentParser()
    ap.add_argument("out")
    ap.add_argument("--stamps", type=int, default=0)
    ap.add_argument("--opt", action="append", default=[])
    a = ap.parse_args()
    opts = {}
    for o in a.opt:
        k, v = o.split("=")
        try:
            opts[k] = int(v)
        except ValueError:
            try:
                opts[k] = float(v)
            except ValueError:
                opts[k] = v
    txt, added = build(a.stamps, opts)
    open(a.out, "w").write(txt)
    print("wrote", a.out, "lines", txt.count("\n"), "nop states added", added)
```
